```python
import torch

def _softmax(x, axis=-1):
    return torch.softmax(x, dim=axis)
def _gelu(x):
    return torch.nn.functional.gelu(x, approximate="tanh")
def _silu(x):
    return torch.nn.functional.silu(x)
def _sigmoid(x):
    return torch.sigmoid(x)
def _layernorm(x, axis=-1, eps=1e-5):
    m = x.mean(dim=axis, keepdim=True)
    v = x.var(dim=axis, keepdim=True, unbiased=False)
    return (x - m) / torch.sqrt(v + eps)
def _scatter_add(tgt, idx, src, axis=0):
    return tgt.clone().index_add_(axis, idx, src)
def _segment_sum(src, seg, n):
    out = torch.zeros((n,) + src.shape[1:], dtype=src.dtype)
    return out.index_add_(0, seg, src)
def _pad(x, pw):
    flat = tuple(v for pair in reversed(pw) for v in pair)
    return torch.nn.functional.pad(x, flat)

kernel_name = 'recurrent_scan__ssm_conv_s4d__moe_arch_mod__prompt'

def setup_inputs():

    _w = (lambda a: (lambda t: t.to(torch.bfloat16) if t.is_floating_point() else t)(torch.as_tensor(a)))
    def _A_setup():
        Bsz, L, D, N = 1, 2048, 512, 128
        return {
            "u": _w((lambda *s: torch.randn(*s, dtype=torch.bfloat16) * 0.05)(Bsz, L, D)),
            "log_A_real": _w((lambda *s: torch.randn(*s, dtype=torch.bfloat16) * 3.2)(D, N) * 0.5),
            "A_imag": _w((lambda *s: torch.randn(*s, dtype=torch.bfloat16) * 0.05)(D, N) * 3.14),
            "C_real": _w((lambda *s: torch.randn(*s, dtype=torch.bfloat16) * 0.1)(D, N) / N ** 0.5),
            "C_imag": _w((lambda *s: torch.randn(*s, dtype=torch.bfloat16) * 0.1)(D, N) / N ** 0.5),
            "log_dt": _w((lambda *s: torch.randn(*s, dtype=torch.bfloat16) * 0.05)(D) * 0.5 - 4.0),
            "D_skip": _w((lambda *s: torch.randn(*s, dtype=torch.bfloat16) * 0.05)(D)),
        }
    _A_in = _A_setup()

    def _B_setup():
        B, S, D, F, C = 1, 2048, 512, 1376, 1
        return {
            "x": _w((lambda *s: torch.randn(*s, dtype=torch.bfloat16) * 0.05)(B, S, D)),
            "w_r": _w((lambda *s: torch.randn(*s, dtype=torch.bfloat16) * 3.2)(D)),
            "w_gate": _w((lambda *s: torch.randn(*s, dtype=torch.bfloat16) * 0.1)(D, F)),
            "w_up": _w((lambda *s: torch.randn(*s, dtype=torch.bfloat16) * 0.1)(D, F)),
            "w_down": _w((lambda *s: torch.randn(*s, dtype=torch.bfloat16) * 0.1)(F, D)),
        }
    _B_in = _B_setup()

    return {
        "A_u": _A_in["u"],
        "A_log_A_real": _A_in["log_A_real"],
        "A_A_imag": _A_in["A_imag"],
        "A_C_real": _A_in["C_real"],
        "A_C_imag": _A_in["C_imag"],
        "A_log_dt": _A_in["log_dt"],
        "A_D_skip": _A_in["D_skip"],
        "B_x": _B_in["x"],
        "B_w_r": _B_in["w_r"],
        "B_w_gate": _B_in["w_gate"],
        "B_w_up": _B_in["w_up"],
        "B_w_down": _B_in["w_down"],
    }

def reference(A_u, A_log_A_real, A_A_imag, A_C_real, A_C_imag, A_log_dt, A_D_skip, B_x, B_w_r, B_w_gate, B_w_up, B_w_down):
    def _A_ref(u, log_A_real, A_imag, C_real, C_imag, log_dt, D_skip):
        L = u.shape[1]
        dt = torch.exp(log_dt)
        A = -torch.exp(log_A_real) + 1j * A_imag
        C = (C_real + 1j * C_imag) * dt[:, None]
        pos = (lambda x, dt: x.to(dt))(torch.arange(L), log_dt.dtype)
        P = torch.exp((A * dt[:, None])[:, :, None] * pos[None, None, :])
        K = 2.0 * torch.einsum("dn,dnl->dl", C, P).real
        L2 = 2 * L
        u_t = (lambda x, *d: x.permute(*d))(u, 0, 2, 1)
        Kf = (lambda x, *a, **k: torch.fft.rfft(x.float(), *a, **k))(K, L2)
        Uf = (lambda x, *a, **k: torch.fft.rfft(x.float(), *a, **k))(u_t, L2)
        y = (lambda x, *a, **k: torch.fft.irfft(x, *a, **k).to(torch.bfloat16))(Uf * Kf[None, :, :], L2)[:, :, :L]
        y = (lambda x, *d: x.permute(*d))(y, 0, 2, 1)
        return y + u * D_skip[None, None, :]

    def _B_ref(x, w_r, w_gate, w_up, w_down):
        B, S, D = x.shape
        C = 1
        r = x @ w_r
        idx = torch.argsort(-r, axis=-1)[:, :C]
        idx_e = (lambda x, n, axis: torch.repeat_interleave(x, n, dim=axis))(idx.reshape(B, C, 1), D, axis=2)
        x_sel = (lambda x, i, axis: torch.take_along_dim(x, i, dim=axis))(x, idx_e, axis=1)
        g = _silu(x_sel @ w_gate)
        u = x_sel @ w_up
        y = (g * u) @ w_down
        r_sel = _sigmoid((lambda x, i, axis: torch.take_along_dim(x, i, dim=axis))(r, idx, axis=1))
        y = y * r_sel.reshape(B, C, 1)
        b_off = (torch.arange(B) * S).reshape(B, 1)
        flat_idx = (idx + b_off).reshape(B * C)
        zero = (x * 0.0).reshape(B * S, D)
        upd = _scatter_add(zero, flat_idx, y.reshape(B * C, D), axis=0)
        return x + upd.reshape(B, S, D)

    x = A_u
    xn = _layernorm(x, axis=-1)
    s = _A_ref(xn, A_log_A_real, A_A_imag, A_C_real, A_C_imag, A_log_dt, A_D_skip)
    g = _silu(_B_ref(xn, B_w_r, B_w_gate, B_w_up, B_w_down))
    return x + s * g
```

```python
KN = "recurrent_scan__ssm_conv_s4d__moe_arch_mod__prompt"
OFF = dict(x=0, lar=8, aim=16, cre=24, cim=32, ldt=40, dsk=48, bx=56, wr=64, wg=72, wu=80, wd=88, out=96, dbg=104, ws=112)
SIZE = dict(x=2097152, lar=131072, aim=131072, cre=131072, cim=131072, ldt=1024, dsk=1024, bx=2097152, wr=1024,
            wg=512*1376*2, wu=512*1376*2, wd=1376*512*2, out=2097152, dbg=256, ws=268435456)

class Kern:
    def __init__(self, name, grid, block, lds, vgpr=128, sgpr=96):
        self.name, self.grid, self.block, self.lds, self.vgpr, self.sgpr = name, grid, block, lds, vgpr, sgpr
        self.L = []
        self.nlab = 0
    def __call__(self, s):
        for line in s.strip("\n").split("\n"):
            line = line.strip()
            if not line: continue
            if line.endswith(":") and not line.startswith(";"):
                self.L.append(line)
            else:
                self.L.append("    " + line)
    def lab(self, base="L"):
        self.nlab += 1
        return f"{self.name[:6]}_{base}_{self.nlab}"
    def load_ptr(self, sreg, name):
        self(f"s_load_dwordx2 s[{sreg}:{sreg+1}], s[0:1], {OFF[name]}")
    def srd_fin(self, sreg, name, size=None):
        self(f"s_mov_b32 s{sreg+2}, {size if size is not None else SIZE[name]}")
        self(f"s_mov_b32 s{sreg+3}, 0x00020000")
    def text(self):
        o = [f".globl {self.name}", ".p2align 8", f".type {self.name},@function", f"{self.name}:"]
        o += self.L
        if o[-1].strip() != "s_endpgm": o.append("    s_endpgm")
        return "\n".join(o) + "\n"
    def desc(self):
        acc = (self.vgpr + 3) // 4 * 4
        return f""".amdhsa_kernel {self.name}
  .amdhsa_next_free_vgpr {self.vgpr}
  .amdhsa_next_free_sgpr {self.sgpr}
  .amdhsa_accum_offset {acc}
  .amdhsa_group_segment_fixed_size 0
  .amdhsa_kernarg_size 120
  .amdhsa_user_sgpr_count 2
  .amdhsa_user_sgpr_kernarg_segment_ptr 1
  .amdhsa_system_sgpr_workgroup_id_x 1
  .amdhsa_float_denorm_mode_32 3
.end_amdhsa_kernel
"""

def module(kerns, comments=""):
    o = []
    for c in comments.strip("\n").split("\n"):
        if c.strip(): o.append("; " + c.strip())
    if len(kerns) == 1 and kerns[0].name == KN + "_kernel":
        k = kerns[0]
        o.append(f"; @launch grid=({k.grid},1,1) block=({k.block},1,1) lds={k.lds}")
    else:
        for k in kerns:
            o.append(f"; @launch kernel={k.name} grid=({k.grid},1,1) block=({k.block},1,1) lds={k.lds}")
    o.append('.amdgcn_target "amdgcn-amd-amdhsa--gfx950"')
    o.append(".text")
    seen = []
    for k in kerns:
        if k.name in seen: continue
        seen.append(k.name); o.append(k.text())
    o.append('.section .rodata,"a"')
    seen = []
    for k in kerns:
        if k.name in seen: continue
        seen.append(k.name); o.append(".p2align 6"); o.append(k.desc())
    return "\n".join(o)
```

```python
import re
TRANS = ("v_exp_f32","v_log_f32","v_rcp_f32","v_rsq_f32","v_sqrt_f32","v_sin_f32","v_cos_f32","v_rcp_iflag_f32")
def regs(tok):
    tok = tok.strip()
    tok = tok.replace("|","")
    if tok.startswith("-"): tok = tok[1:]
    m = re.fullmatch(r"([vsa])(\d+)", tok)
    if m: return [m.group(1)+m.group(2)]
    m = re.fullmatch(r"([vsa])\[(\d+):(\d+)\]", tok)
    if m: return [m.group(1)+str(i) for i in range(int(m.group(2)), int(m.group(3))+1)]
    if tok in ("vcc","vcc_lo","vcc_hi"): return ["vcc"]
    if tok in ("exec","exec_lo","exec_hi"): return ["exec"]
    if tok == "m0": return ["m0"]
    return []
class I:
    def __init__(self, text):
        self.text = text
        t = text.split(";")[0].strip()
        self.label = t[:-1] if t.endswith(":") else None
        self.dirv = t.startswith(".") or t == ""
        self.op = None; self.w = set(); self.r = set(); self.ops = []
        self.srcc = set(); self.srcab = set()
        if self.label or self.dirv: return
        parts = t.split(None, 1)
        op = parts[0]; rest = parts[1] if len(parts) > 1 else ""
        self.op = op
        for suf in ("_e32","_e64","_dpp","_sdwa"):
            if op.endswith(suf): op = op[:-len(suf)]
        self.base = op
        ol = []; depth = 0; cur = ""
        for ch in rest:
            if ch == "[": depth += 1
            if ch == "]": depth -= 1
            if ch == "," and depth == 0: ol.append(cur); cur = ""
            else: cur += ch
        ol.append(cur)
        mods = ""
        if ol:
            last = ol[-1].strip().split(None, 1)
            if last:
                ol[-1] = last[0]; mods = last[1] if len(last) > 1 else ""
        ol = [o.strip() for o in ol]
        self.ops = ol; self.mods = mods
        R = [regs(o) for o in ol]
        self.valu = op.startswith("v_")
        self.mfma = op.startswith("v_mfma")
        self.trans = op in TRANS
        self.dot = op.startswith("v_dot")
        self.dpp = ("quad_perm" in mods or "row_" in mods or "wave_" in mods) and self.valu
        self.perml = op.startswith("v_permlane")
        self.rdlane = op in ("v_readlane_b32","v_readfirstlane_b32","v_writelane_b32")
        self.ds = op.startswith("ds_")
        self.vmem = op.startswith(("buffer_","global_","flat_","scratch_"))
        self.salu = op.startswith("s_")
        self.dstsel = self.valu and (re.search(r"dst_sel:(WORD|BYTE)", mods) is not None or (not op.startswith("v_pk") and not self.dot and re.search(r"op_sel:\[[01],[01],[01],1\]|op_sel:\[[01],[01],1\]", mods) is not None))
        self.lanesel = set()
        allr = lambda L: set(x for l in L for x in l)
        if self.valu:
            if self.perml:
                self.w = allr(R[:2]); self.r = allr(R[:2])
            elif op.startswith("v_cmpx"):
                self.w = {"exec"} | allr(R[:1]); self.r = allr(R[1:])
            elif op.startswith(("v_add_co","v_sub_co","v_addc_co","v_subb_co","v_subrev_co","v_div_scale","v_mad_u64","v_mad_i64")):
                self.w = allr(R[:2]); self.r = allr(R[2:])
            else:
                self.w = allr(R[:1]); self.r = allr(R[1:])
                if op in ("v_fmac_f32","v_dot2c_f32_bf16","v_pk_fmac_f16","v_writelane_b32","v_mac_f32") or self.dpp or "UNUSED_PRESERVE" in mods:
                    self.r |= self.w
            if self.mfma:
                self.srcab = allr(R[1:3]); self.srcc = allr(R[3:4])
            if op in ("v_readlane_b32","v_writelane_b32"): self.lanesel = set(R[2])
        elif self.ds:
            if op.startswith("ds_read") or "_rtn" in op or op.startswith(("ds_bpermute","ds_permute","ds_swizzle")):
                self.w = allr(R[:1]); self.r = allr(R[1:])
                if "d16" in op: self.r |= self.w
            else: self.r = allr(R)
            if "addtid" in op: self.r.add("m0")
        elif self.vmem:
            if "load" in op:
                self.w = allr(R[:1]); self.r = allr(R[1:])
            else: self.r = allr(R)
            self.wide = ("store" in op) and op.endswith(("x3","x4"))
            if self.wide:
                self.sdata = set(R[0]) if op.startswith("buffer") else set(R[1])
        elif self.salu:
            if op.startswith(("s_cmp","s_waitcnt","s_branch","s_cbranch","s_barrier","s_nop","s_endpgm","s_sleep","s_setprio","s_bitcmp")):
                self.r = allr(R)
            else:
                self.w = allr(R[:1]); self.r = allr(R[1:])
                if "saveexec" in op: self.w.add("exec"); self.r.add("exec")
        self.states = 1
        if op == "s_nop": self.states = int(ol[0]) + 1
def need(p, c):
    n = 0
    V = lambda S: set(x for x in S if x[0] in "va" and x != "vcc")
    Sg = lambda S: set(x for x in S if (x[0] == "s" or x == "vcc"))
    if p.valu and not p.mfma:
        wv = V(p.w); ws = Sg(p.w)
        if c.mfma and wv & c.r: n = max(n, 2)
        if c.valu and c.dpp and wv & c.r: n = max(n, 2)
        if c.valu and c.perml and wv & c.r: n = max(n, 2)
        if c.valu and c.rdlane and wv & c.r: n = max(n, 1)
        if p.trans and wv & c.r and not (c.valu and c.trans): n = max(n, 1)
        if p.dstsel and c.valu and wv & (c.r | c.w): n = max(n, 1)
        if p.dot:
            if c.valu and c.base == p.base and len(c.ops) >= 3:
                ab = set(regs(c.ops[1])) | set(regs(c.ops[2]))
                if wv & ab: n = max(n, 3)
            elif wv & (c.r | c.w): n = max(n, 3)
        if ws:
            if c.valu and ws & c.r: n = max(n, 2)
            if c.valu and ws & c.lanesel: n = max(n, 4)
            if c.vmem and ws & c.r: n = max(n, 5)
        if "exec" in p.w:
            if c.valu and c.dpp: n = max(n, 5)
            if c.valu and (c.rdlane or c.perml or c.mfma): n = max(n, 4)
            if c.valu and "exec" in c.r: n = max(n, 2)
    if p.mfma:
        d = p.w
        if c.mfma:
            if d & c.srcab: n = max(n, 8)
            if d & c.srcc and c.srcc != d: n = max(n, 6)
            if d & c.w and c.srcc != d: n = max(n, 6)
        elif (c.valu or c.ds or c.vmem) and d & (c.r | c.w): n = max(n, 8)
        if c.valu and not c.mfma and p.srcc & c.w: n = max(n, 3)
    if p.salu and "m0" in p.w and c.ds and "m0" in c.r: n = max(n, 1)
    if p.vmem and getattr(p, "wide", False) and p.sdata & c.w:
        n = max(n, 2 if c.valu else 1)
    return n
def insert_nops(lines, verbose=False):
    ins = [I(l) for l in lines]
    out = []
    labpos = {}
    br = {}
    for i, x in enumerate(ins):
        if x.op and x.op.startswith(("s_branch","s_cbranch")): br.setdefault(x.ops[0], []).append(x)
    pos = {}
    cur = list(ins)
    def index_map(): return {id(x): i for i, x in enumerate(cur)}
    im = index_map()
    i = 0; total = 0
    while i < len(cur):
        c = cur[i]
        if c.op is None or c.op == "s_nop": i += 1; continue
        worst = 0
        stack = [(i - 1, 0)]; seen = set()
        while stack:
            j, dist = stack.pop()
            while j >= 0 and dist < 8:
                if (j, dist) in seen: break
                seen.add((j, dist))
                p = cur[j]
                if p.label:
                    for b in br.get(p.label, []):
                        stack.append((im[id(b)], dist))
                    j -= 1; continue
                if p.op is None: j -= 1; continue
                if p.op in ("s_branch", "s_endpgm") and j == i - 1 - 0 and False: break
                nd = need(p, c) - dist
                worst = max(worst, nd)
                dist += p.states
                j -= 1
                if j >= 0:
                    q = j
                    while q >= 0 and cur[q].op is None and not cur[q].label: q -= 1
        if worst > 0:
            cur.insert(i, I(f"    s_nop {worst-1}"))
            total += 1
            im = index_map()
            i += 1
        i += 1
    if verbose: print("hazard nops inserted:", total)
    return [x.text for x in cur]
```

```python
import sys, struct, math
sys.path.insert(0, "work")
from asmlib import *
import hz

def f2u(f): return struct.unpack("<I", struct.pack("<f", f))[0]
def vr(a, n=1): return f"v{a}" if n == 1 else f"v[{a}:{a+n-1}]"
def sr(a, n=1): return f"s{a}" if n == 1 else f"s[{a}:{a+n-1}]"

STG = 0; ROWB = 1056; PAIRB = 57 * ROWB
PBUF = 0; TT = 20480
UB = 120384; UCH = 4608
KA = 138816; KCH = 6192; KCP = 1548
Z1O, V8O, V2O, V4O = 0, 624, 928, 1240
LNB = KA
MISC = 163584
LDS_BYTES = 163840
CAND = 0x1000; XT = 0x100000; PART = 0x600000; DBG = 0x1000000; DBGV = 0x4000000; DBGT = 0x800000
S_W, S_WAVE = 2, 3
P_X, P_LAR, P_AIM, P_CRE, P_CIM, P_LDT, P_DSK = 4, 6, 8, 10, 12, 14, 16
P_WR, P_WG, P_WU, P_WD = 20, 22, 24, 26
R_OUT, R_WS = 28, 32
S_C02, S_CG, S_HF, S_SL, S_TA, S_TB, S_T32, S_VAL = 36, 37, 38, 39, 40, 41, 42, 43
S_LDT, S_DSK, S_EP, S_CH, S_H, S_OWN = 44, 46, 48, 49, 50, 51
S_D = 52
S_XO = 56
S_IDX, S_ST, S_KEY, S_J = 60, 61, 62, 63
T = 64
S_STAMP = 80
V_TID, V_LANE = 0, 1
V_M = 2
V_PAR = 6; V_S2 = 7; V_S4 = 9; V_S8 = 13
V_Z1, V_Z2, V_Z4, V_Z8 = 17, 18, 19, 20
V_G, V_PW, V_PR, V_OUT, V_UA, V_UBB, V_T16 = 21, 22, 23, 24, 25, 26, 27
V_GA, V_UP, V_WD, V_XS, V_FO = 28, 32, 36, 44, 45
V_WDO = 46
V_XT = 48
V_CD = 64
V_OG = 68
V_ACC = 84
V_KY, V_KX2, V_KW0, V_KW1 = 84, 85, 86, 87
V_GB = 96
V_SV = 120
V_F = 128
SPIN = 2000

def gen(stop=None, stamps=False, spin=SPIN, dumpv=None):
    k = Kern(KN + "_kernel", 256, 512, LDS_BYTES, vgpr=256, sgpr=102)
    nst = [0]
    def stamp(name=""):
        if stamps and nst[0] < 11:
            k(f"s_memtime {sr(S_STAMP + 2*nst[0], 2)}")
            nst[0] += 1
    def finish_debug():
        k("s_waitcnt vmcnt(0) lgkmcnt(0)\ns_barrier")
        if dumpv is not None:
            a, n = dumpv
            k(f"s_lshl_b32 s{T}, s{S_W}, 9\nv_add_u32 v{255}, s{T}, v0" if a + n <= 255 else "")
            k(f"s_mov_b32 s{T+1}, {n*4}\nv_mul_lo_u32 v255, v255, s{T+1}\ns_mov_b32 s{T+2}, {DBGV}")
            for i in range(n):
                k(f"buffer_store_dword v{a+i}, v255, {sr(R_WS,4)}, s{T+2} offen offset:{4*i}")
            k("s_waitcnt vmcnt(0)")
        k(f"v_lshlrev_b32 v2, 4, v0\ns_mul_i32 s{T}, s{S_W}, {LDS_BYTES}\ns_add_u32 s{T}, s{T}, {DBG}")
        for i in range(20):
            k(f"v_add_u32 v3, {i*8192}, v2\nds_read_b128 v[4:7], v3\ns_waitcnt lgkmcnt(0)\nbuffer_store_dwordx4 v[4:7], v3, {sr(R_WS,4)}, s{T} offen\ns_waitcnt vmcnt(0)")
        k("s_endpgm")

    k(f"s_cmp_ge_u32 s{S_W}, 256\ns_cbranch_scc1 END")
    stamp("start")
    k(f"""s_load_dwordx16 s[4:19], s[0:1], 0
    s_load_dwordx8 s[20:27], s[0:1], 64
    s_load_dwordx2 {sr(R_OUT,2)}, s[0:1], 96
    s_load_dwordx2 {sr(R_WS,2)}, s[0:1], 112
    v_readfirstlane_b32 s{S_WAVE}, v0
    s_and_b32 s{T}, s{S_W}, 7
    s_lshr_b32 s{T+1}, s{S_W}, 4
    s_lshl_b32 s{S_CG}, s{T}, 4
    s_add_u32 s{S_CG}, s{S_CG}, s{T+1}
    s_lshl_b32 s{S_C02}, s{S_CG}, 3
    s_bfe_u32 s{S_HF}, s{S_W}, 0x10003
    s_lshr_b32 s{T+2}, s{S_W}, 6
    s_lshl_b32 s{T+2}, s{T+2}, 3
    s_add_u32 s{T+2}, s{T+2}, s{T}
    s_lshl_b32 s{T+2}, s{T+2}, 3
    s_bfe_u32 s{T+3}, s{S_W}, 0x30003
    s_add_u32 s{S_SL}, s{T+2}, s{T+3}
    s_cmp_lt_u32 s{S_SL}, 172
    s_cselect_b32 s{S_VAL}, 2752, 0
    s_cselect_b32 s{S_SL}, s{S_SL}, 0
    s_cselect_b32 s{T+4}, 2, 0
    s_lshr_b32 s{S_WAVE}, s{S_WAVE}, 6
    s_lshr_b32 s{S_CH}, s{S_WAVE}, 1
    s_and_b32 s{S_H}, s{S_WAVE}, 1
    s_lshr_b32 s{S_OWN}, s{S_WAVE}, 2
    s_xor_b32 s{S_OWN}, s{S_OWN}, s{S_HF}
    s_lshl_b32 s{T+5}, s{S_W}, 13
    s_lshl_b32 s{T+6}, s{S_C02}, 7
    s_lshl_b32 s{T+7}, s{S_SL}, 4
    s_lshl_b32 s{T+8}, s{S_SL}, 13
    s_add_u32 s{T+8}, s{T+8}, 4096
    v_lshlrev_b32 v{V_T16}, 4, v0
    v_and_b32 v{V_LANE}, 63, v0""")
    VX, VWR, VP = 92, 96, 100
    k(f"""v_add_u32 v104, s{T+5}, v{V_T16}
    v_lshl_add_u32 v105, v0, 1, s{T+6}
    v_lshlrev_b32 v106, 4, v{V_LANE}
    v_mul_u32_u24 v{V_FO}, s{S_VAL}, v0
    v_add_u32 v{V_FO}, s{T+7}, v{V_FO}
    v_mul_u32_u24 v{V_WDO}, s{T+4}, v0
    v_add_u32 v{V_WDO}, s{T+8}, v{V_WDO}""")
    for i in range(4): k(f"v_mov_b32 v{VP+i}, 0")
    k(f"""s_waitcnt lgkmcnt(0)
    global_load_dwordx4 {vr(VX,4)}, v104, {sr(P_X,2)}
    global_load_short_d16_hi v{VP}, v105, {sr(P_LAR,2)}
    global_load_short_d16_hi v{VP+1}, v105, {sr(P_AIM,2)}
    global_load_short_d16_hi v{VP+2}, v105, {sr(P_CRE,2)}
    global_load_short_d16_hi v{VP+3}, v105, {sr(P_CIM,2)}
    global_load_dwordx4 {vr(VWR,4)}, v106, {sr(P_WR,2)}
    global_load_dwordx4 {vr(V_GA,4)}, v{V_FO}, {sr(P_WG,2)}
    s_load_dword s{S_EP}, {sr(R_WS,2)}, 0
    s_load_dwordx2 {sr(S_LDT,2)}, {sr(P_LDT,2)}, s{S_C02}
    s_load_dwordx2 {sr(S_DSK,2)}, {sr(P_DSK,2)}, s{S_C02}
    s_mov_b32 s{R_OUT+2}, {SIZE['out']}
    s_mov_b32 s{R_OUT+3}, 0x00020000
    s_mov_b32 s{R_WS+2}, {SIZE['ws']}
    s_mov_b32 s{R_WS+3}, 0x00020000""")
    stamp("loads issued")
    for i in range(8): k(f"v_mov_b32 v{V_WD+i}, 0")
    k(f"v_mov_b32 v{V_XS}, 0")
    B_, KG, Z, ZZ = 104, 105, 106, 107
    k(f"""v_and_b32 v{B_}, 15, v0
    v_lshrrev_b32 v{KG}, 4, v{V_LANE}
    v_lshlrev_b32 v108, 3, v{KG}
    v_sub_u32 v{Z}, v{B_}, v108
    v_add_u32 v{Z}, 16, v{Z}
    v_and_b32 v{ZZ}, 0xffff, v{Z}
    v_lshl_or_b32 v{ZZ}, v{Z}, 16, v{ZZ}""")
    k(f"""v_lshrrev_b32 v108, 7, v0
    v_and_b32 v109, 127, v0
    v_mul_u32_u24 v108, {UCH}, v108
    v_lshl_add_u32 v108, v109, 2, v108
    v_add_u32 v108, {UB}, v108
    v_mov_b32 v110, 0
    ds_write_b32 v108, v110
    v_and_b32 v109, 15, v0
    v_lshlrev_b32 v109, 2, v109
    v_add_u32 v109, {MISC}, v109
    ds_write_b32 v109, v110""")
    for p in range(4):
        k(f"s_mov_b32 s{T+p}, {(2*p) | ((2*p+1) << 16)}")
    for p in range(4):
        k(f"v_pk_sub_u16 v{V_M+p}, v{ZZ}, s{T+p}")
    for p in range(4):
        k(f"v_pk_ashrrev_i16 v{V_M+p}, 15, v{V_M+p} op_sel_hi:[0,1]")
    k(f"s_mul_i32 s{T+4}, s{S_CH}, {KCH}\ns_add_u32 s{T+4}, s{T+4}, {KA}\ns_mov_b32 s{T+5}, {KCP}")
    k(f"""v_sub_u32 v108, 287, v{Z}
    v_and_b32 v{V_PAR}, 1, v108
    v_lshlrev_b32 v{V_PAR}, 1, v{V_PAR}
    v_bfe_u32 v109, v108, 1, 2
    v_and_b32 v108, -2, v108
    s_lshl_b32 s{T+6}, s{S_H}, 8
    s_sub_u32 s{T+6}, s{T+4}, s{T+6}
    s_sub_u32 s{T+6}, s{T+6}, 512
    v_lshl_add_u32 v108, v108, 1, s{T+6}
    v_mad_u32_u24 v{V_Z1}, v109, s{T+5}, v108""")
    OF = 112
    k(f"v_cvt_f32_i32 v{OF}, v{Z}")
    for i in range(1, 8):
        k(f"v_subrev_f32 v{OF+i}, {hex(f2u(float(i)))}, v{OF}")
    k(f"v_mov_b32 v120, 0x4b400000\ns_mov_b32 s{T+7}, 0x05040100\ns_mov_b32 s{T+8}, 0x02020202")
    GG = 128
    for (step, ilist, selbase, vz, off, hmul, umask) in ((2, [4,5,6,7], V_S2, V_Z2, V2O-240+256, 128, 2), (4, list(range(8)), V_S4, V_Z4, V4O-240+256, 64, 1), (8, list(range(8)), V_S8, V_Z8, V8O-240+256, 32, 2)):
        k(f"s_mov_b32 s{T+9}, {hex(f2u(1.0/step))}")
        for i in ilist:
            k(f"v_fma_f32 v{GG+i}, v{OF+i}, s{T+9}, v120")
        k(f"""v_and_b32 v121, -2, v{GG+7}
        v_subrev_u32 v121, 0x4b400000, v121
        v_mul_i32_i24 v122, 0x0202, v121
        v_sub_u32 v122, 0x0100, v122
        v_perm_b32 v122, v122, v122, s{T+7}
        v_bfe_u32 v123, v121, 1, {umask}
        s_mul_i32 s{T+10}, s{S_H}, {hmul}
        s_add_u32 s{T+10}, s{T+10}, s{T+4}
        s_add_u32 s{T+10}, s{T+10}, {off}
        v_lshl_add_u32 v121, v121, 1, s{T+10}
        v_mad_u32_u24 v{vz}, v123, s{T+5}, v121""")
        if step == 2:
            pl = [(3, selbase), (2, selbase+1)]
        else:
            pl = [(p, selbase+p) for p in range(4)]
        for p, dst in pl:
            k(f"v_perm_b32 v{dst}, v{GG+2*p+1}, v{GG+2*p}, s{T+7}")
        for p, dst in pl:
            k(f"v_pk_mad_u16 v{dst}, v{dst}, s{T+8}, v122")
    k(f"""s_mul_i32 s{T+6}, s{S_CH}, {UCH}
    s_lshl_b32 s{T+9}, s{S_H}, 8
    s_sub_u32 s{T+6}, s{T+6}, s{T+9}
    s_add_u32 s{T+6}, s{T+6}, {UB + 512 - 32 - 192}
    v_lshlrev_b32 v108, 4, v{KG}
    v_lshl_add_u32 v108, v{B_}, 5, v108
    v_add_u32 v{V_G}, s{T+6}, v108
    s_lshl_b32 s{T+6}, s{S_H}, 2
    s_add_u32 s{T+6}, s{T+6}, s{S_CH}
    s_mul_i32 s{T+6}, s{T+6}, 1280
    v_mul_u32_u24 v108, 288, v{KG}
    v_lshl_add_u32 v108, v{B_}, 4, v108
    v_add_u32 v{V_PW}, s{T+6}, v108
    v_bfe_u32 v108, v0, 2, 2
    v_mul_u32_u24 v108, 288, v108
    v_and_b32 v109, 0xf0, v0
    v_add_u32 v108, v108, v109
    v_and_b32 v109, 3, v0
    v_lshl_add_u32 v{V_PR}, v109, 2, v108
    v_and_b32 v108, 255, v0
    v_lshlrev_b32 v108, 10, v108
    v_add_u32 v{V_OUT}, s{S_C02}, v108
    s_lshl_b32 s{T+6}, s{S_OWN}, 10
    s_add_u32 s{T+9}, s{T+6}, {UB + 512}
    v_lshl_add_u32 v{V_UA}, v0, 1, s{T+9}
    s_sub_u32 s{T+9}, {UB + 512 + 1024}, s{T+6}
    v_lshl_add_u32 v{V_UBB}, v0, 1, s{T+9}""")
    k(f"""s_lshl_b32 s{T+6}, s{S_CG}, 15
    s_add_u32 s{T+6}, s{T+6}, {XT}
    s_lshl_b32 s{T+9}, s{S_OWN}, 13
    s_add_u32 s{S_XO}, s{T+6}, s{T+9}
    s_add_u32 s{S_XO+2}, s{S_XO}, 16384
    s_xor_b32 s{T+9}, s{T+9}, 8192
    s_add_u32 s{S_XO+1}, s{T+6}, s{T+9}
    s_add_u32 s{S_XO+3}, s{S_XO+1}, 16384""")
    S_ROLE, S_M0 = T+11, T+12
    k(f"""s_lshr_b32 s{S_ROLE}, s{S_WAVE}, 2
    s_xor_b32 s{S_ROLE}, s{S_ROLE}, s{S_H}
    s_lshr_b32 s{T+6}, s{S_CH}, 1
    s_mul_i32 s{T+6}, s{T+6}, {PAIRB}
    s_and_b32 s{T+9}, s{S_CH}, 1
    s_lshl_b32 s{T+9}, s{T+9}, 9
    s_add_u32 s{T+6}, s{T+6}, s{T+9}
    s_lshl_b32 s{T+9}, s{S_H}, 8
    s_add_u32 s{S_M0}, s{T+6}, s{T+9}
    v_lshlrev_b32 v108, 4, v{KG}
    v_add_u32 v108, s{T+6}, v108
    v_mul_u32_u24 v109, {ROWB}, v{B_}
    v_add_u32 v{V_KY}, v108, v109
    v_add_u32 v109, 48, v{B_}
    v_cmp_eq_u32 vcc, 9, v{B_}
    v_cndmask_b32 v109, v109, 40, vcc
    v_cmp_lt_u32 vcc, 9, v{B_}
    v_cndmask_b32 v109, v109, 48, vcc
    v_mul_u32_u24 v109, {ROWB}, v109
    v_add_u32 v{V_KX2}, v108, v109""")
    la, lb = k.lab("ra"), k.lab("rb")
    k(f"""s_cmp_eq_u32 s{S_ROLE}, 0
    s_cbranch_scc0 {la}
    v_lshrrev_b32 v108, 1, v{KG}
    v_lshlrev_b32 v108, 8, v108
    v_lshl_add_u32 v108, v{B_}, 4, v108
    v_and_b32 v109, 1, v{KG}
    v_lshl_add_u32 v108, v109, 3, v108
    s_add_u32 s{T+6}, s{T+4}, 568
    v_sub_u32 v{V_KW0}, s{T+6}, v108
    v_lshlrev_b32 v108, 5, v{B_}
    v_add_u32 v108, {V8O + 16}, v108
    v_mov_b32 v109, {V2O + 272}
    v_cmp_eq_u32 vcc, 9, v{B_}
    v_cndmask_b32 v108, v108, v109, vcc
    v_mov_b32 v109, {V4O + 272}
    v_cmp_lt_u32 vcc, 9, v{B_}
    v_cndmask_b32 v108, v108, v109, vcc
    v_lshl_add_u32 v108, v{KG}, 3, v108
    v_add_u32 v{V_KW1}, s{T+4}, v108
    s_branch {lb}
    {la}:
    v_and_b32 v108, 1, v{KG}
    v_lshlrev_b32 v108, 7, v108
    v_add_u32 v108, s{T+4}, v108
    v_lshlrev_b32 v109, 3, v{B_}
    v_add_u32 v109, {V2O + 16}, v109
    v_lshlrev_b32 v110, 2, v{B_}
    v_add_u32 v110, {V4O + 16}, v110
    v_cmp_lt_u32 vcc, 1, v{KG}
    v_cndmask_b32 v109, v109, v110, vcc
    v_add_u32 v{V_KW0}, v108, v109
    v_cndmask_b32 v110, 4, 64, vcc
    v_add_u32 v{V_KW1}, v{V_KW0}, v110
    {lb}:""")
    LW, LR, LS = 108, 109, 110
    k(f"""s_mul_i32 s{T+6}, s{S_WAVE}, {ROWB}
    s_add_u32 s{T+6}, s{T+6}, {LNB}
    v_lshl_add_u32 v{LW}, v{V_LANE}, 4, s{T+6}
    v_and_b32 v111, 7, v0
    v_mul_u32_u24 v{LR}, {ROWB}, v111
    v_and_b32 v112, -8, v0
    v_add_u32 v112, {LNB}, v112
    v_add_u32 v113, {LNB + 1024}, v{LR}
    v_add_u32 v{LR}, v112, v{LR}
    v_lshrrev_b32 v112, 3, v0
    v_lshlrev_b32 v112, 15, v112
    v_lshl_add_u32 v{LS}, v111, 4, v112
    s_lshl_b32 s{T+9}, s{S_W}, 7
    s_add_u32 s{T+9}, s{T+9}, {XT}
    s_add_u32 s{T+10}, s{T+9}, {64*32768}
    s_waitcnt lgkmcnt(0)
    s_lshr_b32 s{S_TA}, s{S_EP}, 16
    s_add_u32 s{S_TA}, s{S_TA}, 0x4e37
    s_and_b32 s{S_TA}, s{S_TA}, 0xffff
    s_xor_b32 s{S_TB}, s{S_TA}, 0x5a5a
    s_lshl_b32 s{S_T32}, s{S_TB}, 16
    s_or_b32 s{S_T32}, s{S_T32}, s{S_TA}
    s_lshl_b32 s{S_D}, s{S_DSK}, 16
    s_and_b32 s{S_D+1}, s{S_DSK}, 0xffff0000
    s_lshl_b32 s{S_D+2}, s{S_DSK+1}, 16
    s_and_b32 s{S_D+3}, s{S_DSK+1}, 0xffff0000
    s_lshl_b32 s{T+13}, s{S_CH}, 4
    s_lshr_b64 {sr(S_LDT,2)}, {sr(S_LDT,2)}, s{T+13}
    s_lshl_b32 s{S_LDT}, s{S_LDT}, 16""")
    LSTAT = 113
    XF = 128
    DD = 136
    stamp("consts done")
    k(f"s_waitcnt vmcnt(6)")
    stamp("x arrived")
    k(f"ds_write_b128 v{LW}, {vr(VX,4)}")
    for i in range(4):
        k(f"v_lshlrev_b32 v{XF+2*i}, 16, v{VX+i}\nv_and_b32 v{XF+2*i+1}, 0xffff0000, v{VX+i}")
    k(f"v_readfirstlane_b32 s{T+14}, v{XF}")
    for i in range(4):
        k(f"v_pk_add_f32 {vr(DD+2*i,2)}, {vr(XF+2*i,2)}, {sr(T+14,2)} op_sel_hi:[1,0] neg_lo:[0,1] neg_hi:[0,1]")
    k(f"""v_pk_add_f32 v[144:145], {vr(DD,2)}, {vr(DD+2,2)}
    v_pk_mul_f32 v[146:147], {vr(DD,2)}, {vr(DD,2)}
    v_pk_add_f32 v[148:149], {vr(DD+4,2)}, {vr(DD+6,2)}
    v_pk_fma_f32 v[146:147], {vr(DD+2,2)}, {vr(DD+2,2)}, v[146:147]
    v_pk_add_f32 v[144:145], v[144:145], v[148:149]
    v_pk_fma_f32 v[146:147], {vr(DD+4,2)}, {vr(DD+4,2)}, v[146:147]
    v_add_f32 v144, v144, v145
    v_pk_fma_f32 v[146:147], {vr(DD+6,2)}, {vr(DD+6,2)}, v[146:147]
    s_nop 0
    v_add_f32 v145, v146, v147""")
    RED = ["quad_perm:[1,0,3,2] row_mask:0xf bank_mask:0xf", "quad_perm:[2,3,0,1] row_mask:0xf bank_mask:0xf",
           "row_half_mirror row_mask:0xf bank_mask:0xf", "row_mirror row_mask:0xf bank_mask:0xf",
           "row_bcast:15 row_mask:0xa bank_mask:0xf", "row_bcast:31 row_mask:0xc bank_mask:0xf"]
    for m in RED:
        k(f"v_add_f32_dpp v144, v144, v144 {m}\nv_add_f32_dpp v145, v145, v145 {m}")
    k(f"""v_readlane_b32 s{T+6}, v144, 63
    v_readlane_b32 s{T+13}, v145, 63
    v_mov_b32 v146, {hex(f2u(1.0/512))}
    v_mul_f32 v144, s{T+6}, v146
    v_mul_f32 v145, s{T+13}, v146
    v_add_f32 v147, s{T+14}, v144
    v_fma_f32 v145, -v144, v144, v145
    v_max_f32 v145, 0, v145
    v_cvt_pk_bf16_f32 v145, v145, v145
    v_and_b32 v145, 0xffff0000, v145
    v_add_f32 v145, {hex(f2u(1e-5))}, v145
    v_cvt_pk_bf16_f32 v145, v145, v145
    v_and_b32 v145, 0xffff0000, v145
    v_sqrt_f32 v145, v145
    v_add_u32 v149, 1024, v{LW}
    v_cvt_pk_bf16_f32 v148, v147, v145
    s_mov_b64 exec, 1
    ds_write_b32 v149, v148
    s_mov_b64 exec, -1
    s_waitcnt lgkmcnt(0)
    s_barrier""")
    ST = 148
    G0, G1, GS = 152, 156, 160
    k(f"""ds_read_b64 {vr(G0,2)}, v{LR}
    ds_read_b64 {vr(G1,2)}, v{LR} offset:512
    ds_read_b32 v{GS}, v{LSTAT}
    v_lshlrev_b32 v150, 16, v{ST}
    v_and_b32 v151, 0xffff0000, v{ST}
    v_rcp_f32 v151, v151""")
    for i in range(4):
        k(f"v_pk_add_f32 {vr(DD+2*i,2)}, {vr(XF+2*i,2)}, v[150:151] op_sel_hi:[1,0] neg_lo:[0,1] neg_hi:[0,1]")
    k("s_waitcnt lgkmcnt(0)")
    for g in (G0, G1):
        k(f"""v_alignbit_b32 v{g+2}, v{GS}, v{g+1}, 16
        v_alignbit_b32 v{g+3}, s{S_TB}, v{GS}, 16
        v_mov_b32_sdwa v{g+1}, s{S_TA} dst_sel:WORD_1 dst_unused:UNUSED_PRESERVE src0_sel:WORD_0""")
    k(f"""buffer_store_dwordx4 {vr(G0,4)}, v{LS}, {sr(R_WS,4)}, s{T+9} offen sc1
    buffer_store_dwordx4 {vr(G1,4)}, v{LS}, {sr(R_WS,4)}, s{T+10} offen sc1
    global_load_dwordx4 {vr(V_UP,4)}, v{V_FO}, {sr(P_WU,2)}""")
    for f in range(8):
        k(f"global_load_short_d16_hi v{V_WD+f}, v{V_WDO}, {sr(P_WD,2)} offset:{f*1024-4096}")
    stamp("published")
    for i in range(4):
        k(f"v_cvt_pk_bf16_f32 v{164+i}, v{DD+2*i}, v{DD+2*i+1}")
    for i in range(4):
        k(f"v_lshlrev_b32 v{DD+2*i}, 16, v{164+i}\nv_and_b32 v{DD+2*i+1}, 0xffff0000, v{164+i}")
    for i in range(4):
        k(f"v_pk_mul_f32 {vr(DD+2*i,2)}, {vr(DD+2*i,2)}, v[150:151] op_sel:[0,1] op_sel_hi:[1,1]")
    for i in range(4):
        k(f"v_cvt_pk_bf16_f32 v{164+i}, v{DD+2*i}, v{DD+2*i+1}")
    k("s_waitcnt vmcnt(12)")
    k(f"v_dot2_f32_bf16 v144, v164, v{VWR}, 0")
    for i in range(1, 4):
        k(f"v_dot2_f32_bf16 v144, v{164+i}, v{VWR+i}, v144")
    for m in RED:
        k(f"v_add_f32_dpp v144, v144, v144 {m}")
    k(f"""v_cvt_pk_bf16_f32 v144, v144, v144
    v_readlane_b32 s{T+6}, v144, 63
    s_lshl_b32 s{T+13}, s{S_W}, 3
    s_add_u32 s{T+13}, s{T+13}, s{S_WAVE}
    s_sub_u32 s{T+13}, 2047, s{T+13}
    s_ashr_i32 s{T+14}, s{T+6}, 31
    s_or_b32 s{T+14}, s{T+14}, 0x80000000
    s_xor_b32 s{T+6}, s{T+6}, s{T+14}
    s_and_b32 s{T+6}, s{T+6}, 0xffff0000
    s_or_b32 s{T+6}, s{T+6}, s{T+13}
    v_mov_b32 v149, s{T+6}
    v_mov_b32 v146, {MISC}
    s_mov_b64 exec, 1
    ds_max_u64 v146, v[148:149]
    s_mov_b64 exec, -1
    s_waitcnt lgkmcnt(0)
    s_barrier""")
    lc = k.lab("nc")
    k(f"""s_cmp_eq_u32 s{S_WAVE}, 0
    s_cbranch_scc0 {lc}
    ds_read_b64 v[152:153], v146
    s_lshl_b32 s{T+6}, s{S_W}, 4
    s_add_u32 s{T+6}, s{T+6}, {CAND}
    v_mov_b32 v147, 0
    s_waitcnt lgkmcnt(0)
    v_alignbit_b32 v154, s{S_TB}, v152, 16
    v_mov_b32 v155, v153
    v_mov_b32_sdwa v152, s{S_TA} dst_sel:WORD_1 dst_unused:UNUSED_PRESERVE src0_sel:WORD_0
    s_mov_b64 exec, 1
    buffer_store_dwordx4 v[152:155], v147, {sr(R_WS,4)}, s{T+6} offen sc1
    s_mov_b64 exec, -1
    {lc}:""")
    stamp("cand done")
    if stop == "A":
        finish_debug(); k("END:\ns_endpgm"); return k

    LHI = float.fromhex("0x1.7154p+0")
    LLO = (math.log2(math.e) - LHI) * math.log(2.0)
    def exp_acc(dst, src, t):
        k(f"""v_mul_f32 v{dst}, {hex(f2u(LHI))}, {src}
        v_mul_f32 v{t}, {hex(f2u(LLO))}, {src}
        v_exp_f32 v{dst}, v{dst}
        v_fma_f32 v{dst}, v{dst}, v{t}, v{dst}
        v_cvt_pk_bf16_f32 v{dst}, v{dst}, v{dst}
        v_and_b32 v{dst}, 0xffff0000, v{dst}""")
    k(f"s_mov_b32 m0, s{S_M0}\nv_mov_b32 v130, s{S_LDT}")
    exp_acc(128, "v130", 129)
    exp_acc(130, f"v{VP}", 131)
    E1, Y1, E128, B0 = 140, 142, 144, 146
    k(f"""v_mul_f32 v130, v130, v128
    v_mul_f32 v131, v{VP+1}, v128
    v_mul_f32 v130, {hex(f2u(-math.log2(math.e)))}, v130
    v_mul_f32 v131, 0.15915494, v131
    v_add_f32 v128, v128, v128
    v_mul_f32 v{B0}, v{VP+2}, v128
    v_mul_f32 v{B0+1}, v{VP+3}, v128
    v_mul_f32 v132, 0x41000000, v130
    v_mul_f32 v133, 0x41000000, v131
    v_mul_f32 v134, 0x43000000, v130
    v_mul_f32 v135, 0x43000000, v131
    v_fract_f32 v131, v131
    v_fract_f32 v133, v133
    v_fract_f32 v135, v135
    v_exp_f32 v130, v130
    v_exp_f32 v132, v132
    v_exp_f32 v134, v134
    v_cos_f32 v{E1}, v131
    v_sin_f32 v{E1+1}, v131
    v_cos_f32 v{Y1}, v133
    v_sin_f32 v{Y1+1}, v133
    v_cos_f32 v{E128}, v135
    v_sin_f32 v{E128+1}, v135
    v_mov_b32 v136, 0x3f80
    ds_write_addtid_b32 v136 offset:0
    v_pk_mul_f32 {vr(E1,2)}, {vr(E1,2)}, v[130:131] op_sel_hi:[1,0]
    v_pk_mul_f32 {vr(Y1,2)}, {vr(Y1,2)}, v[132:133] op_sel_hi:[1,0] neg_hi:[1,0]
    v_pk_mul_f32 {vr(E128,2)}, {vr(E128,2)}, v[134:135] op_sel_hi:[1,0]""")
    reg = {"E1": E1, "Y1": Y1, "E128": E128, "B0": B0}
    nxt = [148]
    def alloc(name):
        reg[name] = nxt[0]; nxt[0] += 2; assert nxt[0] <= 240
    ops = []
    for i in range(2, 16): ops.append((f"Y{i}", f"Y{i-1}", "Y1", i, 100 - i))
    for q in range(1, 17):
        row = {1: 24, 2: 32, 3: 36, 4: 40, 5: 42, 6: 44, 7: 46}.get(q, 40 + q)
        ops.append((f"B{q}", f"B{q-1}", "E128", row, 200 - q))
    for (n, a, b) in ((2,1,1),(3,2,1),(4,2,2),(5,4,1),(6,4,2),(7,4,3)): ops.append((f"E{n}", f"E{a}", f"E{b}", None, 90 - n))
    for j in range(1, 8): ops.append((f"X0{j}", "B0", f"E{j}", 16 + j, 50))
    for j in range(1, 8): ops.append((f"X1{j}", "B1", f"E{j}", 24 + j, 49))
    for q in (2, 3):
        for jj, j in enumerate((2, 4, 6)): ops.append((f"X{q}{j}", f"B{q}", f"E{j}", 32 + 4*(q-2) + 1 + jj, 48))
    for q in range(4, 8): ops.append((f"X{q}4", f"B{q}", "E4", 40 + 2*(q-4) + 1, 47))
    done = set(reg.keys())
    pend = [("Y1", 1), ("B0", 16)]
    free_pairs = []
    keep = lambda n: n.startswith("E") or n in ("Y1",) or (n[0] == "B" and int(n[1:]) <= 7)
    cv = [240]
    def flush(pl):
        for (n, row) in pl:
            c = cv[0]; cv[0] = 240 + (cv[0] - 240 + 1) % 8
            k(f"v_cvt_pk_bf16_f32 v{c}, v{reg[n]}, v{reg[n]+1}\nds_write_addtid_b32 v{c} offset:{row*ROWB}")
    rem = list(ops)
    TMP = [248, 250, 252, 254]
    retire = []
    while rem:
        ready = sorted([o for o in rem if o[1] in done and o[2] in done], key=lambda o: -o[4])[:4]
        for i, o in enumerate(ready):
            k(f"v_pk_mul_f32 {vr(TMP[i],2)}, {vr(reg[o[1]],2)}, {vr(reg[o[2]],2)} op_sel:[1,1] op_sel_hi:[1,0] neg_lo:[1,0]")
        flush(pend);
        for n in retire: free_pairs.append(reg[n])
        retire = [n for (n, _) in pend if n.startswith("X")]
        pend = []
        for i, o in enumerate(ready):
            if free_pairs: reg[o[0]] = free_pairs.pop()
            else: alloc(o[0])
            k(f"v_pk_fma_f32 {vr(reg[o[0]],2)}, {vr(reg[o[1]],2)}, {vr(reg[o[2]],2)}, {vr(TMP[i],2)} op_sel_hi:[0,1,1]")
            if o[3] is not None: pend.append((o[0], o[3]))
            rem.remove(o)
        for o in ready:
            done.add(o[0])
            if o[0][0] in "YB" and not keep(o[1]): retire.append(o[1])
    flush(pend)
    stamp("kgen done")
    lp = k.lab("np")
    k(f"""s_cmp_lt_u32 s{S_WAVE}, 4
    s_cbranch_scc0 {lp}
    s_mov_b32 s{T+6}, {CAND}
    buffer_load_dwordx4 {vr(V_CD,4)}, v{V_T16}, {sr(R_WS,4)}, s{T+6} offen sc1
    {lp}:""")
    def xt_loads():
        for i in range(4):
            k(f"buffer_load_dwordx4 {vr(V_XT+4*i,4)}, v{V_T16}, {sr(R_WS,4)}, s{S_XO+i} offen sc1")
    xt_loads()
    k("s_waitcnt lgkmcnt(0)\ns_barrier")
    KYB, KXA, KXB, KA0, KA1 = 128, 160, 192, 224, 228
    lb_, lj = k.lab("kb"), k.lab("kj")
    k(f"s_cmp_eq_u32 s{S_ROLE}, 0\ns_cbranch_scc0 {lb_}")
    for s in range(8):
        k(f"ds_read_b128 {vr(KYB+4*s,4)}, v{V_KY} offset:{64*s}")
        k(f"ds_read_b128 {vr(KXA+4*s,4)}, v{V_KY} offset:{16*ROWB + 64*s}")
        k(f"ds_read_b128 {vr(KXB+4*s,4)}, v{V_KX2} offset:{64*s}")
        if s >= 4:
            u = s - 4
            k(f"s_waitcnt lgkmcnt(12)")
            k(f"v_mfma_f32_16x16x32_bf16 {vr(KA0,4)}, {vr(KXA+4*u,4)}, {vr(KYB+4*u,4)}, {vr(KA0,4) if u else 0}")
            k(f"v_mfma_f32_16x16x32_bf16 {vr(KA1,4)}, {vr(KYB+4*u,4)}, {vr(KXB+4*u,4)}, {vr(KA1,4) if u else 0}")
    for u in range(4, 8):
        k(f"s_waitcnt lgkmcnt({3*(7-u)})")
        k(f"v_mfma_f32_16x16x32_bf16 {vr(KA0,4)}, {vr(KXA+4*u,4)}, {vr(KYB+4*u,4)}, {vr(KA0,4)}")
        k(f"v_mfma_f32_16x16x32_bf16 {vr(KA1,4)}, {vr(KYB+4*u,4)}, {vr(KXB+4*u,4)}, {vr(KA1,4)}")
    k(f"""v_cvt_pk_bf16_f32 v232, v{KA0+3}, v{KA0+2}
    v_cvt_pk_bf16_f32 v233, v{KA0+1}, v{KA0}
    v_cvt_pk_bf16_f32 v234, v{KA1}, v{KA1+1}
    v_cvt_pk_bf16_f32 v235, v{KA1+2}, v{KA1+3}""")
    for (va, d) in ((V_KW0, 232), (V_KW1, 234)):
        for u in range(4):
            if u % 2 == 0: k(f"ds_write_b64 v{va}, {vr(d,2)} offset:{u*KCP}")
            else: k(f"ds_write_b32 v{va}, v{d} offset:{u*KCP}\nds_write_b32 v{va}, v{d+1} offset:{u*KCP+4}")
    k(f"s_branch {lj}\n{lb_}:")
    for s in range(8):
        k(f"ds_read_b128 {vr(KYB+4*s,4)}, v{V_KY} offset:{64*s}")
        k(f"ds_read_b128 {vr(KXA+4*s,4)}, v{V_KY} offset:{32*ROWB + 64*s}")
        if s == 6: k("s_waitcnt lgkmcnt(12)\n" + f"v_mfma_f32_16x16x32_bf16 {vr(KA0,4)}, {vr(KXA,4)}, {vr(KYB,4)}, 0")
    for u in range(1, 8):
        k(f"s_waitcnt lgkmcnt({2*(7-u)})")
        k(f"v_mfma_f32_16x16x32_bf16 {vr(KA0,4)}, {vr(KXA+4*u,4)}, {vr(KYB+4*u,4)}, {vr(KA0,4)}")
    k(f"v_cvt_pk_bf16_f32 v232, v{KA0}, v{KA0+1}\nv_cvt_pk_bf16_f32 v233, v{KA0+2}, v{KA0+3}")
    for u in range(4):
        k(f"ds_write_b32 v{V_KW0}, v232 offset:{u*KCP}\nds_write_b32 v{V_KW1}, v233 offset:{u*KCP}")
    k(f"{lj}:")
    stamp("kmfma done")
    l1, l2, l3 = k.lab("cs"), k.lab("cr"), k.lab("co")
    k(f"""s_cmp_lt_u32 s{S_WAVE}, 4
    s_cbranch_scc0 {l1}
    s_mov_b32 s{T+7}, {spin}
    s_waitcnt vmcnt(4)
    {l2}:
    v_cmp_eq_u32_sdwa vcc, v{V_CD}, s{S_TA} src0_sel:WORD_1 src1_sel:DWORD
    v_cmp_eq_u32_sdwa {sr(T+8,2)}, v{V_CD+2}, s{S_TB} src0_sel:WORD_1 src1_sel:DWORD
    s_and_b64 vcc, vcc, {sr(T+8,2)}
    s_cmp_eq_u64 vcc, -1
    s_cbranch_scc1 {l3}
    s_sub_u32 s{T+7}, s{T+7}, 1
    s_cbranch_scc1 {l3}
    buffer_load_dwordx4 {vr(V_CD,4)}, v{V_T16}, {sr(R_WS,4)}, s{T+6} offen sc1
    s_waitcnt vmcnt(0)
    s_branch {l2}
    {l3}:
    s_mov_b32 s{T+8}, 0x05040100
    v_mov_b32 v122, v{V_CD+1}
    v_perm_b32 v{V_CD}, v{V_CD+2}, v{V_CD}, s{T+8}""")
    for m in RED:
        k(f"v_max_u32_dpp v122, v122, v122 {m}")
    k(f"""v_readlane_b32 s{T+8}, v122, 63
    v_mov_b32 v123, {MISC + 16}
    v_cmp_eq_u32 vcc, s{T+8}, v{V_CD+1}
    s_mov_b64 exec, vcc
    ds_max_u64 v123, {vr(V_CD,2)}
    s_mov_b64 exec, -1
    {l1}:
    v_mov_b32 v123, {MISC + 16}
    s_waitcnt lgkmcnt(0)
    s_barrier
    ds_read_b64 v[120:121], v123""")
    le = k.lab("ne")
    k(f"""s_or_b32 s{T+6}, s{S_W}, s{S_WAVE}
    s_cmp_eq_u32 s{T+6}, 0
    s_cbranch_scc0 {le}
    s_lshl_b32 s{T+6}, s{S_TA}, 16
    v_mov_b32 v122, s{T+6}
    v_mov_b32 v123, 0
    s_mov_b64 exec, 1
    buffer_store_dword v122, v123, {sr(R_WS,4)}, 0 offen sc1
    s_mov_b64 exec, -1
    {le}:""")
    if stop == "B":
        k(f"s_waitcnt lgkmcnt(0)")
        finish_debug(); k("END:\ns_endpgm"); return k
    def F(a, e): return V_F + (a*4 + e)*4
    q = []
    def lds(txt, name):
        k(txt); q.append(name)
        assert len(q) <= 15, "too many lds ops"
    def wait(name):
        if name in q:
            i = q.index(name); n = len(q) - 1 - i
            k(f"s_waitcnt lgkmcnt({n})")
            del q[:i+1]
    q.append("idx")
    Z1T, Z2T = 96, 100
    FN1, FN1B, FN2, FN4 = 116, 94, 88, 92
    for e in range(4):
        lds(f"ds_read_b128 {vr(F(0,e),4)}, v{V_Z1} offset:{512-64*e}", f"z1a{e}")
        lds(f"ds_read_b32 v{Z1T+e}, v{V_Z1} offset:{512-64*e+16}", f"z1b{e}")
    for e in range(4):
        lds(f"ds_read_b128 {vr(Z2T+4*e,4)}, v{V_Z2} offset:{32*e}", f"z2{e}")
    wait("idx")
    k(f"""v_readfirstlane_b32 s{S_ST}, v120
    v_readfirstlane_b32 s{S_KEY}, v121
    s_and_b32 s{S_IDX}, s{S_KEY}, 0x7ff
    s_sub_u32 s{S_IDX}, 2047, s{S_IDX}
    s_lshr_b32 s{S_J}, s{S_IDX}, 8
    s_lshl_b32 s{T+6}, s{S_IDX}, 10
    v_lshl_add_u32 v123, v0, 1, s{T+6}
    global_load_short_d16_hi v{V_XS}, v123, {sr(P_X,2)}
    s_add_u32 s{S_IDX}, s{T+6}, s{S_C02}""")
    def align4(dst, src, fifth):
        for p in range(4):
            hi = f"v{src+p+1}" if p < 3 else f"v{fifth}"
            k(f"v_alignbyte_b32 v{dst+p}, {hi}, v{src+p}, v{V_PAR}")
    def perm2(dst, d):
        k(f"""v_perm_b32 v{dst+3}, v{d+1}, v{d}, v{V_S2}
        v_perm_b32 v{dst+2}, v{d+1}, v{d}, v{V_S2+1}
        v_perm_b32 v{dst+1}, v{d+2}, v{d+1}, v{V_S2}
        v_perm_b32 v{dst}, v{d+2}, v{d+1}, v{V_S2+1}""")
    def perm4(dst, d, sel):
        for p in range(4): k(f"v_perm_b32 v{dst+p}, v{d+1}, v{d}, v{sel+p}")
    z4land = lambda a, e: F(7,0) + ((a-2)*4 + e)*2
    z8land = {(4,0): F(6,0), (4,2): F(6,1), (5,0): F(6,2), (5,2): F(6,3), (6,0): Z2T, (6,2): Z2T+4, (7,0): Z2T+8, (7,2): Z2T+12}
    z4l = [(a, e) for a in (2,3) for e in range(4)]
    def z4load(a, e): lds(f"ds_read_b64 {vr(z4land(a,e),2)}, v{V_Z4} offset:{128*(a-2)+16*e}", f"z4{a}{e}")
    def z8load(a, e): lds(f"ds_read_b128 {vr(z8land[(a,e)],4)}, v{V_Z8} offset:{64*(a-4)+8*e}", f"z8{a}{e}")
    for e in range(4):
        wait(f"z1b{e}")
        z4load(*z4l[2*e]); z4load(*z4l[2*e+1])
        align4(F(0,e), F(0,e), Z1T+e)
    for e in range(4):
        wait(f"z2{e}")
        z8load(4 + e//2, 2*(e%2))
        perm2(F(1,e), Z2T+4*e)
    fine = [(f"ds_read_b128 {vr(FN1,4)}, v{V_Z1} offset:0", "f1a"), (f"ds_read_b32 v{FN1B}, v{V_Z1} offset:16", "f1b"),
            (f"ds_read_b128 {vr(FN2,4)}, v{V_Z2} offset:256", "f2"), (f"ds_read_b64 {vr(FN4,2)}, v{V_Z4} offset:256", "f4")]
    for i, (a, e) in enumerate(z4l):
        wait(f"z4{a}{e}")
        if i < 4: z8load(6 + i//2, 2*(i%2))
        else: lds(*fine[i-4])
        perm4(F(a,e), z4land(a,e), V_S4)
    for a in range(4, 8):
        for e in (0, 2):
            wait(f"z8{a}{e}")
            perm4(F(a,e), z8land[(a,e)], V_S8)
            perm4(F(a,e+1), z8land[(a,e)]+2, V_S8)
    wait("f4")
    lf = k.lab("nf")
    k(f"s_cmp_eq_u32 s{S_H}, 0\ns_cbranch_scc0 {lf}")
    align4(FN1, FN1, FN1B)
    perm2(96, FN2)
    perm4(100, FN4, V_S4)
    for p in range(4):
        k(f"""v_bfi_b32 v{F(0,0)+p}, v{V_M+p}, 0, v{F(0,0)+p}
        v_bfi_b32 v{F(1,0)+p}, v{V_M+p}, v{FN1+p}, v{F(1,0)+p}
        v_bfi_b32 v{F(2,0)+p}, v{V_M+p}, v{96+p}, v{F(2,0)+p}
        v_bfi_b32 v{F(4,0)+p}, v{V_M+p}, v{100+p}, v{F(4,0)+p}""")
    k(f"{lf}:")
    stamp("F built")
    l1, l2 = k.lab("xr"), k.lab("xo")
    k(f"s_mov_b32 s{T+7}, {spin}\ns_waitcnt vmcnt(1)\n{l1}:")
    for i in range(4):
        d = V_XT + 4*i
        k(f"v_cmp_eq_u32_sdwa {sr(T+2*(i%2),2) if i else 'vcc'}, v{d+1}, s{S_TA} src0_sel:WORD_1 src1_sel:DWORD")
        k(f"v_cmp_eq_u32_sdwa {sr(T+4,2)}, v{d+3}, s{S_TB} src0_sel:WORD_1 src1_sel:DWORD")
        if i: k(f"s_and_b64 vcc, vcc, {sr(T+2*(i%2),2)}")
        k(f"s_and_b64 vcc, vcc, {sr(T+4,2)}")
    k(f"""s_cmp_eq_u64 vcc, -1
    s_cbranch_scc1 {l2}
    s_sub_u32 s{T+7}, s{T+7}, 1
    s_cbranch_scc1 {l2}""")
    xt_loads()
    k(f"s_waitcnt vmcnt(0)\ns_branch {l1}\n{l2}:")
    stamp("xt ok")
    NL2E = T + 8
    k(f"s_mov_b32 s{NL2E}, {hex(f2u(-math.log2(math.e)))}")
    def norm4(d, X, N, t, keepn):
        k(f"""v_lshlrev_b32 v{t+1}, 16, v{d+3}
        v_and_b32 v{t}, 0xffff0000, v{d+2}
        v_rcp_f32 v{t+1}, v{t+1}
        v_lshlrev_b32 v{X}, 16, v{d}
        v_and_b32 v{X+1}, 0xffff0000, v{d}
        v_lshlrev_b32 v{X+2}, 16, v{d+1}
        v_lshlrev_b32 v{X+3}, 16, v{d+2}
        v_pk_add_f32 {vr(N,2)}, {vr(X,2)}, {vr(t,2)} op_sel_hi:[1,0] neg_lo:[0,1] neg_hi:[0,1]
        v_pk_add_f32 {vr(N+2,2)}, {vr(X+2,2)}, {vr(t,2)} op_sel_hi:[1,0] neg_lo:[0,1] neg_hi:[0,1]
        v_cvt_pk_bf16_f32 v{t+2}, v{N}, v{N+1}
        v_cvt_pk_bf16_f32 v{t+3}, v{N+2}, v{N+3}
        v_lshlrev_b32 v{N}, 16, v{t+2}
        v_and_b32 v{N+1}, 0xffff0000, v{t+2}
        v_lshlrev_b32 v{N+2}, 16, v{t+3}
        v_and_b32 v{N+3}, 0xffff0000, v{t+3}
        v_pk_mul_f32 {vr(N,2)}, {vr(N,2)}, {vr(t,2)} op_sel:[0,1] op_sel_hi:[1,1]
        v_pk_mul_f32 {vr(N+2,2)}, {vr(N+2,2)}, {vr(t,2)} op_sel:[0,1] op_sel_hi:[1,1]
        v_cvt_pk_bf16_f32 v{t+2}, v{N}, v{N+1}
        v_cvt_pk_bf16_f32 v{t+3}, v{N+2}, v{N+3}""")
        if keepn:
            k(f"""v_lshlrev_b32 v{N}, 16, v{t+2}
            v_and_b32 v{N+1}, 0xffff0000, v{t+2}
            v_lshlrev_b32 v{N+2}, 16, v{t+3}
            v_and_b32 v{N+3}, 0xffff0000, v{t+3}""")
    def silu4(G, B):
        k(f"""v_pk_mul_f32 {vr(G,2)}, {vr(B,2)}, {sr(NL2E,2)} op_sel_hi:[1,0]
        v_pk_mul_f32 {vr(G+2,2)}, {vr(B+2,2)}, {sr(NL2E,2)} op_sel_hi:[1,0]""")
        for c in range(4): k(f"v_exp_f32 v{G+c}, v{G+c}")
        k(f"""v_pk_add_f32 {vr(G,2)}, {vr(G,2)}, 1.0 op_sel_hi:[1,0]
        v_pk_add_f32 {vr(G+2,2)}, {vr(G+2,2)}, 1.0 op_sel_hi:[1,0]""")
        for c in range(4): k(f"v_rcp_f32 v{G+c}, v{G+c}")
        k(f"""v_pk_mul_f32 {vr(G,2)}, {vr(G,2)}, {vr(B,2)}
        v_pk_mul_f32 {vr(G+2,2)}, {vr(G+2,2)}, {vr(B+2,2)}""")
    for i in range(4):
        d = V_XT + 4*i
        X, N, t = 96 + 12*(i%2), 100 + 12*(i%2), 104 + 12*(i%2)
        own = (i % 2 == 0)
        norm4(d, X, N, t, own)
        va = V_UA if own else V_UBB
        o = 2048*(i >> 1)
        k(f"""ds_write_b16 v{va}, v{t+2} offset:{o}
        ds_write_b16_d16_hi v{va}, v{t+2} offset:{o+UCH}
        ds_write_b16 v{va}, v{t+3} offset:{o+2*UCH}
        ds_write_b16_d16_hi v{va}, v{t+3} offset:{o+3*UCH}""")
        if own:
            G = V_OG + 8*(i >> 1); C = G + 4
            silu4(G, N)
            k(f"""v_pk_mul_f32 {vr(N,2)}, {vr(N,2)}, {sr(S_D,2)}
            v_pk_mul_f32 {vr(N+2,2)}, {vr(N+2,2)}, {sr(S_D+2,2)}
            v_pk_fma_f32 {vr(C,2)}, {vr(N,2)}, {vr(G,2)}, {vr(X,2)}
            v_pk_fma_f32 {vr(C+2,2)}, {vr(N+2,2)}, {vr(G+2,2)}, {vr(X+2,2)}""")
    stamp("xt consumed")
    lv1 = k.lab("f1")
    PP = 96
    k(f"""s_cmp_eq_u32 s{S_VAL}, 0
    s_cbranch_scc1 {lv1}
    s_and_b32 s{T}, s{S_ST}, 0xffff0000
    s_lshl_b32 s{T+1}, s{S_ST}, 16
    v_rcp_f32 v112, s{T}
    v_lshrrev_b32 v114, 2, v{V_LANE}
    v_lshlrev_b32 v114, 2, v114
    s_lshl_b32 s{T+2}, s{S_WAVE}, 6
    s_add_u32 s{T+2}, s{T+2}, {TT}
    v_add_u32 v114, s{T+2}, v114
    s_waitcnt vmcnt(0)
    v_subrev_f32 v{V_XS}, s{T+1}, v{V_XS}
    v_cvt_pk_bf16_f32 v{V_XS}, v{V_XS}, v{V_XS}
    v_and_b32 v{V_XS}, 0xffff0000, v{V_XS}
    v_mul_f32 v{V_XS}, v{V_XS}, v112
    v_cvt_pk_bf16_f32 v112, v{V_XS}, 0
    v_lshlrev_b32 v113, 16, v112""")
    for i in range(8):
        k(f"v_dot2_f32_bf16 v{PP+i}, v{V_GA+i//2}, v{112+i%2}, 0")
        k(f"v_dot2_f32_bf16 v{PP+8+i}, v{V_UP+i//2}, v{112+i%2}, 0")
    for i in range(8): k(f"v_permlane32_swap_b32 v{PP+i}, v{PP+8+i}")
    for i in range(8): k(f"v_add_f32 v{PP+i}, v{PP+i}, v{PP+8+i}")
    for i in range(4): k(f"v_permlane16_swap_b32 v{PP+i}, v{PP+4+i}")
    for i in range(4): k(f"v_add_f32 v{PP+i}, v{PP+i}, v{PP+4+i}")
    k(f"""v_add_f32_dpp v{PP}, v{PP}, v{PP} row_ror:8 row_mask:0xf bank_mask:0x3
    v_add_f32_dpp v{PP+1}, v{PP+1}, v{PP+1} row_ror:8 row_mask:0xf bank_mask:0x3
    v_add_f32_dpp v{PP}, v{PP+2}, v{PP+2} row_ror:8 row_mask:0xf bank_mask:0xc
    v_add_f32_dpp v{PP+1}, v{PP+3}, v{PP+3} row_ror:8 row_mask:0xf bank_mask:0xc
    v_add_f32_dpp v{PP+2}, v{PP}, v{PP} row_half_mirror row_mask:0xf bank_mask:0x5
    v_add_f32_dpp v{PP+2}, v{PP+1}, v{PP+1} row_half_mirror row_mask:0xf bank_mask:0xa
    v_add_f32_dpp v{PP+2}, v{PP+2}, v{PP+2} quad_perm:[1,0,3,2] row_mask:0xf bank_mask:0xf
    v_add_f32_dpp v{PP+2}, v{PP+2}, v{PP+2} quad_perm:[2,3,0,1] row_mask:0xf bank_mask:0xf
    ds_write_b32 v114, v{PP+2}
    {lv1}:
    s_waitcnt lgkmcnt(0)
    s_barrier""")
    stamp("B5")
    if stop == "C":
        finish_debug(); k("END:\ns_endpgm"); return k
    def ffn2():
        lv2 = k.lab("f2")
        k(f"""s_cmp_eq_u32 s{S_VAL}, 0
        s_cbranch_scc1 {lv2}
        v_lshlrev_b32 v4, 2, v{V_LANE}
        v_add_u32 v4, {TT}, v4
        ds_read2_b32 v[2:3], v4 offset0:0 offset1:64
        v_lshrrev_b32 v6, 2, v0
        v_mul_u32_u24 v6, 5504, v6
        v_and_b32 v7, 3, v0
        v_lshl_add_u32 v6, v7, 3, v6
        s_lshl_b32 s{T}, s{S_SL}, 5
        s_add_u32 s{T}, s{T}, {PART}
        v_mov_b32 v9, s{S_T32}
        s_waitcnt lgkmcnt(0)
        v_add_f32 v2, v2, v3
        v_mov_b32 v3, v2
        v_permlane32_swap_b32 v2, v3
        v_add_f32 v2, v2, v3
        v_mov_b32 v3, v2
        v_permlane16_swap_b32 v2, v3
        v_add_f32 v2, v2, v3
        v_cvt_pk_bf16_f32 v2, v2, v2
        v_and_b32 v2, 0xffff0000, v2
        v_mul_f32 v3, s{NL2E}, v2
        v_exp_f32 v3, v3
        v_add_f32 v3, 1.0, v3
        v_rcp_f32 v3, v3
        v_mul_f32 v3, v3, v2
        v_cvt_pk_bf16_f32 v3, v3, v3
        v_and_b32 v3, 0xffff0000, v3
        v_mul_f32_dpp v3, v2, v3 row_ror:8 row_mask:0xf bank_mask:0xf
        v_cvt_pk_bf16_f32 v3, v3, v3
        v_and_b32 v3, 0xffff0000, v3""")
        hs = [T+1, T+2, T+3, T+4, T+5, T+6, T+7, T+10]
        for f in range(8): k(f"v_readlane_b32 s{hs[f]}, v3, {f}")
        k(f"v_mul_f32 v8, s{hs[0]}, v{V_WD}")
        for f in range(1, 8): k(f"v_fmac_f32 v8, s{hs[f]}, v{V_WD+f}")
        k(f"buffer_store_dwordx2 v[8:9], v6, {sr(R_WS,4)}, s{T} offen sc1\n{lv2}:")
    ffn2()
    stamp("ffn2")
    S_OWNW = T + 13
    k(f"""s_lshr_b32 s{T}, s{S_J}, 1
    s_xor_b32 s{T}, s{T}, s{S_J}
    s_and_b32 s{T}, s{T}, 1
    s_bfe_u32 s{T+1}, s{S_IDX}, 0x30010
    s_lshl_b32 s{T}, s{T}, 3
    s_or_b32 s{T}, s{T}, s{T+1}
    s_lshl_b32 s{T+1}, s{S_HF}, 3
    s_or_b32 s{T+1}, s{T+1}, s{S_WAVE}
    s_cmp_eq_u32 s{T}, s{T+1}
    s_cselect_b32 s{S_OWNW}, 1, 0""")
    PL = 192
    PRD = 2
    def part_loads():
        k(f"""s_mul_i32 s{T}, s{S_CG}, 5504
        s_add_u32 s{T}, s{T}, {PART}
        v_lshlrev_b32 v16, 4, v{V_LANE}""")
        for i in range(4):
            k(f"buffer_load_dwordx4 {vr(PL+4*i,4)}, v16, {sr(R_WS,4)}, s{T} offen offset:{1024*i} sc1")
        k(f"""s_add_u32 s{T}, s{T}, 4096
        buffer_load_dwordx4 {vr(PL+16,4)}, v16, {sr(R_WS,4)}, s{T} offen sc1
        s_mov_b64 exec, 0xffffff
        buffer_load_dwordx4 {vr(PL+20,4)}, v16, {sr(R_WS,4)}, s{T} offen offset:1024 sc1
        s_mov_b64 exec, -1""")
    def conv(tiles):
        jA, jB, jC, jD = tiles
        acc = {"A": V_ACC, "B": V_ACC+4, "C": V_ACC, "D": V_ACC+8}
        steps = []
        for s in range(jA, -1, -1):
            for e in range(4): steps.append((s, e, [("A", jA-s)]))
        endA = len(steps)
        for s in range(jB, -1, -1):
            for e in range(4): steps.append((s, e, [("B", jB-s)]))
        endB = len(steps)
        for s in range(jC, -1, -1):
            for e in range(4): steps.append((s, e, [("C", jC-s), ("D", jD-s)]))
        endC = len(steps)
        for s in range(jD, jC, -1):
            for e in range(4): steps.append((s, e, [("D", jD-s)]))
        endD = len(steps)
        NB = 6; PF = 5
        del q[:]
        def gload(i):
            s, e, _ = steps[i]
            lds(f"ds_read_b128 {vr(V_GB+4*(i%NB),4)}, v{V_G} offset:{512*s+64*(3-e)}", f"g{i}")
        def pw(t, buf): lds(f"ds_write_b128 v{V_PW}, {vr(acc[t],4)} offset:{buf*10240}", f"pw{t}")
        def bar_rd(t, buf):
            wait(f"pw{t}"); k("s_barrier")
            for h in range(2):
                for c in range(2):
                    o = 40*buf + 20*h + 10*c
                    lds(f"ds_read2st64_b32 {vr(PRD+4*h+2*c,2)}, v{V_PR} offset0:{o} offset1:{o+5}", f"pr{t}{h}{c}")
        def epi(t, j):
            own = 0 if t in "AC" else 1
            slot = 0 if t in "AB" else 1
            G = V_OG + 8*slot; C = G + 4
            le_, ls_ = k.lab("ep"), k.lab("es")
            wait(f"pr{t}11")
            k(f"""s_cmp_eq_u32 s{S_OWN}, {own}
            s_cbranch_scc0 {le_}
            v_pk_add_f32 {vr(PRD,2)}, {vr(PRD,2)}, {vr(PRD+4,2)}
            v_pk_add_f32 {vr(PRD+2,2)}, {vr(PRD+2,2)}, {vr(PRD+6,2)}
            s_sub_u32 s{T}, s{S_IDX}, {j*262144}
            s_mov_b32 s{T+1}, {j*262144}
            v_cmp_ne_u32 vcc, s{T}, v{V_OUT}
            v_pk_fma_f32 {vr(PRD+4,2)}, {vr(PRD,2)}, {vr(G,2)}, {vr(C,2)}
            v_pk_fma_f32 {vr(PRD+6,2)}, {vr(PRD+2,2)}, {vr(G+2,2)}, {vr(C+2,2)}
            v_cvt_pk_bf16_f32 v10, v{PRD+4}, v{PRD+5}
            v_cvt_pk_bf16_f32 v11, v{PRD+6}, v{PRD+7}
            s_mov_b64 exec, vcc
            buffer_store_dwordx2 v[10:11], v{V_OUT}, {sr(R_OUT,4)}, s{T+1} offen
            s_mov_b64 exec, -1
            s_cmp_eq_u32 s{S_J}, {j}
            s_cbranch_scc0 {le_}""")
            for c in range(4): k(f"v_mov_b32 v{V_SV+c}, v{PRD+c}\nv_mov_b32 v{V_SV+4+c}, v{V_XT+8*slot+c}")
            k(f"{le_}:")
        ev = {}
        def at(i, fn): ev.setdefault(min(i, endD), []).append(fn)
        at(endA+1, lambda: pw("A", 0)); at(endA+3, lambda: bar_rd("A", 0)); at(endA+6, lambda: epi("A", jA))
        at(endB+1, lambda: pw("B", 1)); at(endB+3, lambda: bar_rd("B", 1)); at(endB+6, lambda: epi("B", jB))
        def pl():
            lp_ = k.lab("pl")
            k(f"""s_cmp_eq_u32 s{S_OWNW}, 0
            s_cbranch_scc1 {lp_}
            v_mov_b32 v{PL+20}, 0
            v_mov_b32 v{PL+21}, s{S_T32}
            v_mov_b32 v{PL+22}, 0
            v_mov_b32 v{PL+23}, s{S_T32}""")
            part_loads()
            k(f"{lp_}:")
        at(endC+1, pl)
        at(endC+1, lambda: pw("C", 0)); at(endC+3, lambda: bar_rd("C", 0)); at(endC+6, lambda: epi("C", jC))
        at(endD, lambda: pw("D", 1)); at(endD, lambda: bar_rd("D", 1)); at(endD, lambda: epi("D", jD))
        first = set()
        for i in range(min(PF, endD)): gload(i)
        for i in range(endD):
            for fn in ev.get(i, []): fn()
            wait(f"g{i}")
            g = V_GB + 4*(i % NB)
            for (t, a) in steps[i][2]:
                c = vr(acc[t],4) if t in first else "0"
                first.add(t)
                k(f"v_mfma_f32_16x16x32_bf16 {vr(acc[t],4)}, {vr(F(a,steps[i][1]),4)}, {vr(g,4)}, {c}")
            if i + PF < endD: gload(i + PF)
        for fn in ev.get(endD, []): fn()
    lh1, lfin = k.lab("h1"), k.lab("fin")
    k(f"s_cmp_eq_u32 s{S_HF}, 0\ns_cbranch_scc0 {lh1}")
    conv((0, 3, 4, 7))
    k(f"s_branch {lfin}\n{lh1}:")
    conv((1, 2, 5, 6))
    k(f"{lfin}:")
    stamp("conv done")
    ldone, l1, l2 = k.lab("dn"), k.lab("pr"), k.lab("po")
    k(f"""s_cmp_eq_u32 s{S_OWNW}, 0
    s_cbranch_scc1 {ldone}
    s_mov_b32 s{T+7}, {spin}
    s_waitcnt vmcnt(1)
    {l1}:
    v_cmp_eq_u32 vcc, s{S_T32}, v{PL+1}""")
    for i in range(1, 12):
        k(f"v_cmp_eq_u32 {sr(T+2*(i%2),2)}, s{S_T32}, v{PL+2*i+1}\ns_and_b64 vcc, vcc, {sr(T+2*(i%2),2)}")
    k(f"""s_cmp_eq_u64 vcc, -1
    s_cbranch_scc1 {l2}
    s_sub_u32 s{T+7}, s{T+7}, 1
    s_cbranch_scc1 {l2}""")
    part_loads()
    k(f"s_waitcnt vmcnt(0)\ns_branch {l1}\n{l2}:")
    for i in range(1, 6):
        k(f"v_add_f32 v{PL}, v{PL}, v{PL+4*i}\nv_add_f32 v{PL+2}, v{PL+2}, v{PL+4*i+2}")
    for m in ("quad_perm:[2,3,0,1]", "row_ror:4", "row_ror:8"):
        k(f"v_add_f32_dpp v{PL}, v{PL}, v{PL} {m} row_mask:0xf bank_mask:0xf\nv_add_f32_dpp v{PL+2}, v{PL+2}, v{PL+2} {m} row_mask:0xf bank_mask:0xf")
    for sw in ("v_permlane32_swap_b32", "v_permlane16_swap_b32"):
        k(f"""v_mov_b32 v{PL+1}, v{PL}
        v_mov_b32 v{PL+3}, v{PL+2}
        {sw} v{PL}, v{PL+1}
        {sw} v{PL+2}, v{PL+3}
        v_add_f32 v{PL}, v{PL}, v{PL+1}
        v_add_f32 v{PL+2}, v{PL+2}, v{PL+3}""")
    X, N, t, Y, G = 96, 100, 104, 108, 112
    k(f"""v_cvt_pk_bf16_f32 v{PL}, v{PL}, v{PL+2}
    s_ashr_i32 s{T+2}, s{S_KEY}, 31
    s_not_b32 s{T+2}, s{T+2}
    s_or_b32 s{T+2}, s{T+2}, 0x80000000
    s_xor_b32 s{T+2}, s{T+2}, s{S_KEY}
    s_and_b32 s{T+2}, s{T+2}, 0xffff0000
    v_readlane_b32 s{T}, v{PL}, 0
    v_readlane_b32 s{T+1}, v{PL}, 1
    v_mov_b32 v{G}, s{T+2}
    v_mul_f32 v{G}, s{NL2E}, v{G}
    v_exp_f32 v{G}, v{G}
    v_add_f32 v{G}, 1.0, v{G}
    v_rcp_f32 v{G}, v{G}
    v_cvt_pk_bf16_f32 v{G}, v{G}, v{G}
    v_and_b32 v{G}, 0xffff0000, v{G}
    s_lshl_b32 s{T+2}, s{T}, 16
    s_and_b32 s{T+3}, s{T}, 0xffff0000
    s_lshl_b32 s{T+4}, s{T+1}, 16
    s_and_b32 s{T+5}, s{T+1}, 0xffff0000
    v_pk_mul_f32 {vr(Y,2)}, {vr(G,2)}, {sr(T+2,2)} op_sel_hi:[0,1]
    v_pk_mul_f32 {vr(Y+2,2)}, {vr(G,2)}, {sr(T+4,2)} op_sel_hi:[0,1]
    v_cvt_pk_bf16_f32 v{G}, v{Y}, v{Y+1}
    v_cvt_pk_bf16_f32 v{G+1}, v{Y+2}, v{Y+3}
    v_lshlrev_b32 v{Y}, 16, v{G}
    v_and_b32 v{Y+1}, 0xffff0000, v{G}
    v_lshlrev_b32 v{Y+2}, 16, v{G+1}
    v_and_b32 v{Y+3}, 0xffff0000, v{G+1}""")
    norm4(V_SV+4, X, N, t, True)
    k(f"""v_pk_add_f32 {vr(Y,2)}, {vr(Y,2)}, {vr(N,2)}
    v_pk_add_f32 {vr(Y+2,2)}, {vr(Y+2,2)}, {vr(N+2,2)}
    v_cvt_pk_bf16_f32 v{G}, v{Y}, v{Y+1}
    v_cvt_pk_bf16_f32 v{G+1}, v{Y+2}, v{Y+3}
    v_lshlrev_b32 v{Y}, 16, v{G}
    v_and_b32 v{Y+1}, 0xffff0000, v{G}
    v_lshlrev_b32 v{Y+2}, 16, v{G+1}
    v_and_b32 v{Y+3}, 0xffff0000, v{G+1}""")
    silu4(G, Y)
    k(f"""v_pk_fma_f32 {vr(N,2)}, {vr(N,2)}, {sr(S_D,2)}, {vr(V_SV,2)}
    v_pk_fma_f32 {vr(N+2,2)}, {vr(N+2,2)}, {sr(S_D+2,2)}, {vr(V_SV+2,2)}
    s_lshl_b32 s{T+1}, s{S_J}, 18
    s_sub_u32 s{T}, s{S_IDX}, s{T+1}
    v_cmp_eq_u32 vcc, s{T}, v{V_OUT}
    v_pk_fma_f32 {vr(N,2)}, {vr(N,2)}, {vr(G,2)}, {vr(X,2)}
    v_pk_fma_f32 {vr(N+2,2)}, {vr(N+2,2)}, {vr(G+2,2)}, {vr(X+2,2)}
    v_cvt_pk_bf16_f32 v10, v{N}, v{N+1}
    v_cvt_pk_bf16_f32 v11, v{N+2}, v{N+3}
    s_mov_b64 exec, vcc
    buffer_store_dwordx2 v[10:11], v{V_OUT}, {sr(R_OUT,4)}, s{T+1} offen
    s_mov_b64 exec, -1
    {ldone}:""")
    if stamps:
        stamp("end")
        k(f"""s_waitcnt lgkmcnt(0)
        s_lshl_b32 s{T}, s{S_W}, 3
        s_add_u32 s{T}, s{T}, s{S_WAVE}
        s_lshl_b32 s{T}, s{T}, 7
        s_add_u32 s{T}, s{T}, {DBGT}
        v_lshlrev_b32 v2, 2, v{V_LANE}""")
        for i in range(2*nst[0]):
            k(f"v_writelane_b32 v3, s{S_STAMP+i}, {i}")
        k(f"s_mov_b64 exec, {(1 << (2*nst[0])) - 1}\nbuffer_store_dword v3, v2, {sr(R_WS,4)}, s{T} offen")
    k("s_waitcnt vmcnt(0)\nEND:\ns_endpgm")
    return k

HEADER = open("cdna_kernels/" + KN + ".s.ref").read().split("; Override launch")[0] if __name__ == "__main__" else ""
def emit(path, **kw):
    k = gen(**kw)
    k.L = hz.insert_nops(k.L, verbose=True)
    open(path, "w").write(module([k]))
    return k

if __name__ == "__main__":
    import argparse
    ap = argparse.ArgumentParser()
    ap.add_argument("out"); ap.add_argument("--stop"); ap.add_argument("--stamps", action="store_true")
    ap.add_argument("--spin", type=int, default=SPIN)
    a = ap.parse_args()
    emit(a.out, stop=a.stop, stamps=a.stamps, spin=a.spin)
```

```python
import sys, struct, math
sys.path.insert(0, "work")
from asmlib import *
import hz

def f2u(f): return struct.unpack("<I", struct.pack("<f", f))[0]
def vr(a, n=1): return f"v{a}" if n == 1 else f"v[{a}:{a+n-1}]"
def sr(a, n=1): return f"s{a}" if n == 1 else f"s[{a}:{a+n-1}]"

STG = 0; ROWB = 1056; PAIRB = 57 * ROWB
PBUF = 0; TT = 20480
UB = 120384; UCH = 4608
KA = 138816; KCH = 6192; KCP = 1548
Z1O, V8O, V2O, V4O = 0, 624, 928, 1240
LNB = KA
MISC = 163584
LDS_BYTES = 163840
CAND = 0x1000; XT = 0x100000; PART = 0x600000; DBG = 0x1000000; DBGV = 0x4000000; DBGT = 0x800000
S_W, S_WAVE = 2, 3
P_X, P_LAR, P_AIM, P_CRE, P_CIM, P_LDT, P_DSK = 4, 6, 8, 10, 12, 14, 16
P_WR, P_WG, P_WU, P_WD = 20, 22, 24, 26
R_OUT, R_WS = 28, 32
S_C02, S_CG, S_HF, S_SL, S_TA, S_TB, S_T32, S_VAL = 36, 37, 38, 39, 40, 41, 42, 43
S_LDT, S_DSK, S_EP, S_CH, S_H, S_OWN = 44, 46, 48, 49, 50, 51
S_D = 52
S_XO = 56
S_IDX, S_ST, S_KEY, S_J = 60, 61, 62, 63
T = 64
S_STAMP = 80
V_TID, V_LANE = 0, 1
V_M = 2
V_PAR = 6; V_S2 = 7; V_S4 = 9; V_S8 = 13
V_Z1, V_Z2, V_Z4, V_Z8 = 17, 18, 19, 20
V_G, V_PW, V_PR, V_OUT, V_UA, V_UBB, V_T16 = 21, 22, 23, 24, 25, 26, 27
V_GA, V_UP, V_WD, V_XS, V_FO = 28, 32, 36, 44, 45
V_WDO = 46
V_XT = 48
V_CD = 64
V_OG = 68
V_ACC = 84
V_KY, V_KX2, V_KW0, V_KW1 = 84, 85, 86, 87
V_GB = 96
V_SV = 120
V_F = 128
SPIN = 2000

def gen(stop=None, stamps=False, spin=SPIN, dumpv=None, rt=False, sel=None, opt=None):
    k = Kern(KN + "_kernel", 256, 512, LDS_BYTES, vgpr=256, sgpr=102)
    nst = [0]; k.stamp_names = []; opt = opt or {}
    def stamp(name=""):
        if stamps and nst[0] < 11 and (sel is None or name in sel):
            k(f"{'s_memrealtime' if rt else 's_memtime'} {sr(S_STAMP + 2*nst[0], 2)} ; stamp {nst[0]} {name}")
            nst[0] += 1; k.stamp_names.append(name)
    def finish_debug():
        k("s_waitcnt vmcnt(0) lgkmcnt(0)\ns_barrier")
        if dumpv is not None:
            a, n = dumpv
            k(f"s_lshl_b32 s{T}, s{S_W}, 9\nv_add_u32 v{255}, s{T}, v0" if a + n <= 255 else "")
            k(f"s_mov_b32 s{T+1}, {n*4}\nv_mul_lo_u32 v255, v255, s{T+1}\ns_mov_b32 s{T+2}, {DBGV}")
            for i in range(n):
                k(f"buffer_store_dword v{a+i}, v255, {sr(R_WS,4)}, s{T+2} offen offset:{4*i}")
            k("s_waitcnt vmcnt(0)")
        k(f"v_lshlrev_b32 v2, 4, v0\ns_mul_i32 s{T}, s{S_W}, {LDS_BYTES}\ns_add_u32 s{T}, s{T}, {DBG}")
        for i in range(20):
            k(f"v_add_u32 v3, {i*8192}, v2\nds_read_b128 v[4:7], v3\ns_waitcnt lgkmcnt(0)\nbuffer_store_dwordx4 v[4:7], v3, {sr(R_WS,4)}, s{T} offen\ns_waitcnt vmcnt(0)")
        k("s_endpgm")

    k(f"s_cmp_ge_u32 s{S_W}, 256\ns_cbranch_scc1 END")
    stamp("start")
    k(f"""s_load_dwordx16 s[4:19], s[0:1], 0
    s_load_dwordx8 s[20:27], s[0:1], 64
    s_load_dwordx2 {sr(R_OUT,2)}, s[0:1], 96
    s_load_dwordx2 {sr(R_WS,2)}, s[0:1], 112
    v_readfirstlane_b32 s{S_WAVE}, v0
    s_and_b32 s{T}, s{S_W}, 7
    s_lshr_b32 s{T+1}, s{S_W}, 4
    s_lshl_b32 s{S_CG}, s{T}, 4
    s_add_u32 s{S_CG}, s{S_CG}, s{T+1}
    s_lshl_b32 s{S_C02}, s{S_CG}, 3
    s_bfe_u32 s{S_HF}, s{S_W}, 0x10003
    s_lshr_b32 s{T+2}, s{S_W}, 6
    s_lshl_b32 s{T+2}, s{T+2}, 3
    s_add_u32 s{T+2}, s{T+2}, s{T}
    s_lshl_b32 s{T+2}, s{T+2}, 3
    s_bfe_u32 s{T+3}, s{S_W}, 0x30003
    s_add_u32 s{S_SL}, s{T+2}, s{T+3}
    s_cmp_lt_u32 s{S_SL}, 172
    s_cselect_b32 s{S_VAL}, 2752, 0
    s_cselect_b32 s{S_SL}, s{S_SL}, 0
    s_cselect_b32 s{T+4}, 2, 0
    s_lshr_b32 s{S_WAVE}, s{S_WAVE}, 6
    s_lshr_b32 s{S_CH}, s{S_WAVE}, 1
    s_and_b32 s{S_H}, s{S_WAVE}, 1
    s_lshr_b32 s{S_OWN}, s{S_WAVE}, 2
    s_xor_b32 s{S_OWN}, s{S_OWN}, s{S_HF}
    s_lshl_b32 s{T+5}, s{S_W}, 13
    s_lshl_b32 s{T+6}, s{S_C02}, 7
    s_lshl_b32 s{T+7}, s{S_SL}, 4
    s_lshl_b32 s{T+8}, s{S_SL}, 13
    s_add_u32 s{T+8}, s{T+8}, 4096
    v_lshlrev_b32 v{V_T16}, 4, v0
    v_and_b32 v{V_LANE}, 63, v0""")
    VX, VWR, VP = 92, 96, 100
    k(f"""v_add_u32 v104, s{T+5}, v{V_T16}
    v_lshl_add_u32 v105, v0, 1, s{T+6}
    v_lshlrev_b32 v106, 4, v{V_LANE}
    v_mul_u32_u24 v{V_FO}, s{S_VAL}, v0
    v_add_u32 v{V_FO}, s{T+7}, v{V_FO}
    v_mul_u32_u24 v{V_WDO}, s{T+4}, v0
    v_add_u32 v{V_WDO}, s{T+8}, v{V_WDO}""")
    for i in range(4): k(f"v_mov_b32 v{VP+i}, 0")
    k(f"""s_waitcnt lgkmcnt(0)
    global_load_dwordx4 {vr(VX,4)}, v104, {sr(P_X,2)}
    global_load_short_d16_hi v{VP}, v105, {sr(P_LAR,2)}
    global_load_short_d16_hi v{VP+1}, v105, {sr(P_AIM,2)}
    global_load_short_d16_hi v{VP+2}, v105, {sr(P_CRE,2)}
    global_load_short_d16_hi v{VP+3}, v105, {sr(P_CIM,2)}
    global_load_dwordx4 {vr(VWR,4)}, v106, {sr(P_WR,2)}
    global_load_dwordx4 {vr(V_GA,4)}, v{V_FO}, {sr(P_WG,2)}
    s_load_dword s{S_EP}, {sr(R_WS,2)}, 0
    s_load_dwordx2 {sr(S_LDT,2)}, {sr(P_LDT,2)}, s{S_C02}
    s_load_dwordx2 {sr(S_DSK,2)}, {sr(P_DSK,2)}, s{S_C02}
    s_mov_b32 s{R_OUT+2}, {SIZE['out']}
    s_mov_b32 s{R_OUT+3}, 0x00020000
    s_mov_b32 s{R_WS+2}, {SIZE['ws']}
    s_mov_b32 s{R_WS+3}, 0x00020000""")
    stamp("loads issued")
    for i in range(8): k(f"v_mov_b32 v{V_WD+i}, 0")
    k(f"v_mov_b32 v{V_XS}, 0")
    B_, KG, Z, ZZ = 104, 105, 106, 107
    k(f"""v_and_b32 v{B_}, 15, v0
    v_lshrrev_b32 v{KG}, 4, v{V_LANE}
    v_lshlrev_b32 v108, 3, v{KG}
    v_sub_u32 v{Z}, v{B_}, v108
    v_add_u32 v{Z}, 16, v{Z}
    v_and_b32 v{ZZ}, 0xffff, v{Z}
    v_lshl_or_b32 v{ZZ}, v{Z}, 16, v{ZZ}""")
    k(f"""v_lshrrev_b32 v108, 7, v0
    v_and_b32 v109, 127, v0
    v_mul_u32_u24 v108, {UCH}, v108
    v_lshl_add_u32 v108, v109, 2, v108
    v_add_u32 v108, {UB}, v108
    v_mov_b32 v110, 0
    ds_write_b32 v108, v110
    v_and_b32 v109, 15, v0
    v_lshlrev_b32 v109, 2, v109
    v_add_u32 v109, {MISC}, v109
    ds_write_b32 v109, v110""")
    for p in range(4):
        k(f"s_mov_b32 s{T+p}, {(2*p) | ((2*p+1) << 16)}")
    for p in range(4):
        k(f"v_pk_sub_u16 v{V_M+p}, v{ZZ}, s{T+p}")
    for p in range(4):
        k(f"v_pk_ashrrev_i16 v{V_M+p}, 15, v{V_M+p} op_sel_hi:[0,1]")
    k(f"s_mul_i32 s{T+4}, s{S_CH}, {KCH}\ns_add_u32 s{T+4}, s{T+4}, {KA}\ns_mov_b32 s{T+5}, {KCP}")
    k(f"""v_sub_u32 v108, 287, v{Z}
    v_and_b32 v{V_PAR}, 1, v108
    v_lshlrev_b32 v{V_PAR}, 1, v{V_PAR}
    v_bfe_u32 v109, v108, 1, 2
    v_and_b32 v108, -2, v108
    s_lshl_b32 s{T+6}, s{S_H}, 8
    s_sub_u32 s{T+6}, s{T+4}, s{T+6}
    s_sub_u32 s{T+6}, s{T+6}, 512
    v_lshl_add_u32 v108, v108, 1, s{T+6}
    v_mad_u32_u24 v{V_Z1}, v109, s{T+5}, v108""")
    OF = 112
    k(f"v_cvt_f32_i32 v{OF}, v{Z}")
    for i in range(1, 8):
        k(f"v_subrev_f32 v{OF+i}, {hex(f2u(float(i)))}, v{OF}")
    k(f"v_mov_b32 v120, 0x4b400000\ns_mov_b32 s{T+7}, 0x05040100\ns_mov_b32 s{T+8}, 0x02020202")
    GG = 128
    for (step, ilist, selbase, vz, off, hmul, umask) in ((2, [4,5,6,7], V_S2, V_Z2, V2O-240+256, 128, 2), (4, list(range(8)), V_S4, V_Z4, V4O-240+256, 64, 1), (8, list(range(8)), V_S8, V_Z8, V8O-240+256, 32, 2)):
        k(f"s_mov_b32 s{T+9}, {hex(f2u(1.0/step))}")
        for i in ilist:
            k(f"v_fma_f32 v{GG+i}, v{OF+i}, s{T+9}, v120")
        k(f"""v_and_b32 v121, -2, v{GG+7}
        v_subrev_u32 v121, 0x4b400000, v121
        v_mul_i32_i24 v122, 0x0202, v121
        v_sub_u32 v122, 0x0100, v122
        v_perm_b32 v122, v122, v122, s{T+7}
        v_bfe_u32 v123, v121, 1, {umask}
        s_mul_i32 s{T+10}, s{S_H}, {hmul}
        s_add_u32 s{T+10}, s{T+10}, s{T+4}
        s_add_u32 s{T+10}, s{T+10}, {off}
        v_lshl_add_u32 v121, v121, 1, s{T+10}
        v_mad_u32_u24 v{vz}, v123, s{T+5}, v121""")
        if step == 2:
            pl = [(3, selbase), (2, selbase+1)]
        else:
            pl = [(p, selbase+p) for p in range(4)]
        for p, dst in pl:
            k(f"v_perm_b32 v{dst}, v{GG+2*p+1}, v{GG+2*p}, s{T+7}")
        for p, dst in pl:
            k(f"v_pk_mad_u16 v{dst}, v{dst}, s{T+8}, v122")
    k(f"""s_mul_i32 s{T+6}, s{S_CH}, {UCH}
    s_lshl_b32 s{T+9}, s{S_H}, 8
    s_sub_u32 s{T+6}, s{T+6}, s{T+9}
    s_add_u32 s{T+6}, s{T+6}, {UB + 512 - 32 - 192}
    v_lshlrev_b32 v108, 4, v{KG}
    v_lshl_add_u32 v108, v{B_}, 5, v108
    v_add_u32 v{V_G}, s{T+6}, v108
    s_lshl_b32 s{T+6}, s{S_H}, 2
    s_add_u32 s{T+6}, s{T+6}, s{S_CH}
    s_mul_i32 s{T+6}, s{T+6}, 1280
    v_mul_u32_u24 v108, 288, v{KG}
    v_lshl_add_u32 v108, v{B_}, 4, v108
    v_add_u32 v{V_PW}, s{T+6}, v108
    v_bfe_u32 v108, v0, 2, 2
    v_mul_u32_u24 v108, 288, v108
    v_and_b32 v109, 0xf0, v0
    v_add_u32 v108, v108, v109
    v_and_b32 v109, 3, v0
    v_lshl_add_u32 v{V_PR}, v109, 2, v108
    v_and_b32 v108, 255, v0
    v_lshlrev_b32 v108, 10, v108
    v_add_u32 v{V_OUT}, s{S_C02}, v108
    s_lshl_b32 s{T+6}, s{S_OWN}, 10
    s_add_u32 s{T+9}, s{T+6}, {UB + 512}
    v_lshl_add_u32 v{V_UA}, v0, 1, s{T+9}
    s_sub_u32 s{T+9}, {UB + 512 + 1024}, s{T+6}
    v_lshl_add_u32 v{V_UBB}, v0, 1, s{T+9}""")
    k(f"""s_lshl_b32 s{T+6}, s{S_CG}, 15
    s_add_u32 s{T+6}, s{T+6}, {XT}
    s_lshl_b32 s{T+9}, s{S_OWN}, 13
    s_add_u32 s{S_XO}, s{T+6}, s{T+9}
    s_add_u32 s{S_XO+2}, s{S_XO}, 16384
    s_xor_b32 s{T+9}, s{T+9}, 8192
    s_add_u32 s{S_XO+1}, s{T+6}, s{T+9}
    s_add_u32 s{S_XO+3}, s{S_XO+1}, 16384""")
    S_ROLE, S_M0 = T+11, T+12
    k(f"""s_lshr_b32 s{S_ROLE}, s{S_WAVE}, 2
    s_xor_b32 s{S_ROLE}, s{S_ROLE}, s{S_H}
    s_lshr_b32 s{T+6}, s{S_CH}, 1
    s_mul_i32 s{T+6}, s{T+6}, {PAIRB}
    s_and_b32 s{T+9}, s{S_CH}, 1
    s_lshl_b32 s{T+9}, s{T+9}, 9
    s_add_u32 s{T+6}, s{T+6}, s{T+9}
    s_lshl_b32 s{T+9}, s{S_H}, 8
    s_add_u32 s{S_M0}, s{T+6}, s{T+9}
    v_lshlrev_b32 v108, 4, v{KG}
    v_add_u32 v108, s{T+6}, v108
    v_mul_u32_u24 v109, {ROWB}, v{B_}
    v_add_u32 v{V_KY}, v108, v109
    v_add_u32 v109, 48, v{B_}
    v_cmp_eq_u32 vcc, 9, v{B_}
    v_cndmask_b32 v109, v109, 40, vcc
    v_cmp_lt_u32 vcc, 9, v{B_}
    v_cndmask_b32 v109, v109, 48, vcc
    v_mul_u32_u24 v109, {ROWB}, v109
    v_add_u32 v{V_KX2}, v108, v109""")
    la, lb = k.lab("ra"), k.lab("rb")
    k(f"""s_cmp_eq_u32 s{S_ROLE}, 0
    s_cbranch_scc0 {la}
    v_lshrrev_b32 v108, 1, v{KG}
    v_lshlrev_b32 v108, 8, v108
    v_lshl_add_u32 v108, v{B_}, 4, v108
    v_and_b32 v109, 1, v{KG}
    v_lshl_add_u32 v108, v109, 3, v108
    s_add_u32 s{T+6}, s{T+4}, 568
    v_sub_u32 v{V_KW0}, s{T+6}, v108
    v_lshlrev_b32 v108, 5, v{B_}
    v_add_u32 v108, {V8O + 16}, v108
    v_mov_b32 v109, {V2O + 272}
    v_cmp_eq_u32 vcc, 9, v{B_}
    v_cndmask_b32 v108, v108, v109, vcc
    v_mov_b32 v109, {V4O + 272}
    v_cmp_lt_u32 vcc, 9, v{B_}
    v_cndmask_b32 v108, v108, v109, vcc
    v_lshl_add_u32 v108, v{KG}, 3, v108
    v_add_u32 v{V_KW1}, s{T+4}, v108
    s_branch {lb}
    {la}:
    v_and_b32 v108, 1, v{KG}
    v_lshlrev_b32 v108, 7, v108
    v_add_u32 v108, s{T+4}, v108
    v_lshlrev_b32 v109, 3, v{B_}
    v_add_u32 v109, {V2O + 16}, v109
    v_lshlrev_b32 v110, 2, v{B_}
    v_add_u32 v110, {V4O + 16}, v110
    v_cmp_lt_u32 vcc, 1, v{KG}
    v_cndmask_b32 v109, v109, v110, vcc
    v_add_u32 v{V_KW0}, v108, v109
    v_cndmask_b32 v110, 4, 64, vcc
    v_add_u32 v{V_KW1}, v{V_KW0}, v110
    {lb}:""")
    LW, LR, LS = 108, 109, 110
    k(f"""s_mul_i32 s{T+6}, s{S_WAVE}, {ROWB}
    s_add_u32 s{T+6}, s{T+6}, {LNB}
    v_lshl_add_u32 v{LW}, v{V_LANE}, 4, s{T+6}
    v_and_b32 v111, 7, v0
    v_mul_u32_u24 v{LR}, {ROWB}, v111
    v_and_b32 v112, -8, v0
    v_add_u32 v112, {LNB}, v112
    v_add_u32 v113, {LNB + 1024}, v{LR}
    v_add_u32 v{LR}, v112, v{LR}
    v_lshrrev_b32 v112, 3, v0
    v_lshlrev_b32 v112, 15, v112
    v_lshl_add_u32 v{LS}, v111, 4, v112
    s_lshl_b32 s{T+9}, s{S_W}, 7
    s_add_u32 s{T+9}, s{T+9}, {XT}
    s_add_u32 s{T+10}, s{T+9}, {64*32768}
    s_waitcnt lgkmcnt(0)
    s_lshr_b32 s{S_TA}, s{S_EP}, 16
    s_add_u32 s{S_TA}, s{S_TA}, 0x4e37
    s_and_b32 s{S_TA}, s{S_TA}, 0xffff
    s_xor_b32 s{S_TB}, s{S_TA}, 0x5a5a
    s_lshl_b32 s{S_T32}, s{S_TB}, 16
    s_or_b32 s{S_T32}, s{S_T32}, s{S_TA}
    s_lshl_b32 s{S_D}, s{S_DSK}, 16
    s_and_b32 s{S_D+1}, s{S_DSK}, 0xffff0000
    s_lshl_b32 s{S_D+2}, s{S_DSK+1}, 16
    s_and_b32 s{S_D+3}, s{S_DSK+1}, 0xffff0000
    s_lshl_b32 s{T+13}, s{S_CH}, 4
    s_lshr_b64 {sr(S_LDT,2)}, {sr(S_LDT,2)}, s{T+13}
    s_lshl_b32 s{S_LDT}, s{S_LDT}, 16""")
    LSTAT = 113
    XF = 128
    DD = 136
    stamp("consts done")
    k(f"s_waitcnt vmcnt(6)")
    stamp("x arrived")
    k(f"ds_write_b128 v{LW}, {vr(VX,4)}")
    for i in range(4):
        k(f"v_lshlrev_b32 v{XF+2*i}, 16, v{VX+i}\nv_and_b32 v{XF+2*i+1}, 0xffff0000, v{VX+i}")
    k(f"v_readfirstlane_b32 s{T+14}, v{XF}")
    for i in range(4):
        k(f"v_pk_add_f32 {vr(DD+2*i,2)}, {vr(XF+2*i,2)}, {sr(T+14,2)} op_sel_hi:[1,0] neg_lo:[0,1] neg_hi:[0,1]")
    k(f"""v_pk_add_f32 v[144:145], {vr(DD,2)}, {vr(DD+2,2)}
    v_pk_mul_f32 v[146:147], {vr(DD,2)}, {vr(DD,2)}
    v_pk_add_f32 v[148:149], {vr(DD+4,2)}, {vr(DD+6,2)}
    v_pk_fma_f32 v[146:147], {vr(DD+2,2)}, {vr(DD+2,2)}, v[146:147]
    v_pk_add_f32 v[144:145], v[144:145], v[148:149]
    v_pk_fma_f32 v[146:147], {vr(DD+4,2)}, {vr(DD+4,2)}, v[146:147]
    v_add_f32 v144, v144, v145
    v_pk_fma_f32 v[146:147], {vr(DD+6,2)}, {vr(DD+6,2)}, v[146:147]
    s_nop 0
    v_add_f32 v145, v146, v147""")
    RED = ["quad_perm:[1,0,3,2] row_mask:0xf bank_mask:0xf", "quad_perm:[2,3,0,1] row_mask:0xf bank_mask:0xf",
           "row_half_mirror row_mask:0xf bank_mask:0xf", "row_mirror row_mask:0xf bank_mask:0xf",
           "row_bcast:15 row_mask:0xa bank_mask:0xf", "row_bcast:31 row_mask:0xc bank_mask:0xf"]
    for m in RED:
        k(f"v_add_f32_dpp v144, v144, v144 {m}\nv_add_f32_dpp v145, v145, v145 {m}")
    k(f"""v_readlane_b32 s{T+6}, v144, 63
    v_readlane_b32 s{T+13}, v145, 63
    v_mov_b32 v146, {hex(f2u(1.0/512))}
    v_mul_f32 v144, s{T+6}, v146
    v_mul_f32 v145, s{T+13}, v146
    v_add_f32 v147, s{T+14}, v144
    v_fma_f32 v145, -v144, v144, v145
    v_max_f32 v145, 0, v145
    v_cvt_pk_bf16_f32 v145, v145, v145
    v_and_b32 v145, 0xffff0000, v145
    v_add_f32 v145, {hex(f2u(1e-5))}, v145
    v_cvt_pk_bf16_f32 v145, v145, v145
    v_and_b32 v145, 0xffff0000, v145
    v_sqrt_f32 v145, v145
    v_add_u32 v149, 1024, v{LW}
    v_cvt_pk_bf16_f32 v148, v147, v145
    s_mov_b64 exec, 1
    ds_write_b32 v149, v148
    s_mov_b64 exec, -1
    s_waitcnt lgkmcnt(0)
    s_barrier""")
    ST = 148
    G0, G1, GS = 152, 156, 160
    k(f"""ds_read_b64 {vr(G0,2)}, v{LR}
    ds_read_b64 {vr(G1,2)}, v{LR} offset:512
    ds_read_b32 v{GS}, v{LSTAT}
    v_lshlrev_b32 v150, 16, v{ST}
    v_and_b32 v151, 0xffff0000, v{ST}
    v_rcp_f32 v151, v151""")
    for i in range(4):
        k(f"v_pk_add_f32 {vr(DD+2*i,2)}, {vr(XF+2*i,2)}, v[150:151] op_sel_hi:[1,0] neg_lo:[0,1] neg_hi:[0,1]")
    k("s_waitcnt lgkmcnt(0)")
    for g in (G0, G1):
        k(f"""v_alignbit_b32 v{g+2}, v{GS}, v{g+1}, 16
        v_alignbit_b32 v{g+3}, s{S_TB}, v{GS}, 16
        v_mov_b32_sdwa v{g+1}, s{S_TA} dst_sel:WORD_1 dst_unused:UNUSED_PRESERVE src0_sel:WORD_0""")
    k(f"""buffer_store_dwordx4 {vr(G0,4)}, v{LS}, {sr(R_WS,4)}, s{T+9} offen sc1
    buffer_store_dwordx4 {vr(G1,4)}, v{LS}, {sr(R_WS,4)}, s{T+10} offen sc1
    global_load_dwordx4 {vr(V_UP,4)}, v{V_FO}, {sr(P_WU,2)}""")
    for f in range(8):
        k(f"global_load_short_d16_hi v{V_WD+f}, v{V_WDO}, {sr(P_WD,2)} offset:{f*1024-4096}")
    stamp("published")
    for i in range(4):
        k(f"v_cvt_pk_bf16_f32 v{164+i}, v{DD+2*i}, v{DD+2*i+1}")
    for i in range(4):
        k(f"v_lshlrev_b32 v{DD+2*i}, 16, v{164+i}\nv_and_b32 v{DD+2*i+1}, 0xffff0000, v{164+i}")
    for i in range(4):
        k(f"v_pk_mul_f32 {vr(DD+2*i,2)}, {vr(DD+2*i,2)}, v[150:151] op_sel:[0,1] op_sel_hi:[1,1]")
    for i in range(4):
        k(f"v_cvt_pk_bf16_f32 v{164+i}, v{DD+2*i}, v{DD+2*i+1}")
    k("s_waitcnt vmcnt(12)")
    k(f"v_dot2_f32_bf16 v144, v164, v{VWR}, 0")
    for i in range(1, 4):
        k(f"v_dot2_f32_bf16 v144, v{164+i}, v{VWR+i}, v144")
    for m in RED:
        k(f"v_add_f32_dpp v144, v144, v144 {m}")
    k(f"""v_cvt_pk_bf16_f32 v144, v144, v144
    v_readlane_b32 s{T+6}, v144, 63
    s_lshl_b32 s{T+13}, s{S_W}, 3
    s_add_u32 s{T+13}, s{T+13}, s{S_WAVE}
    s_sub_u32 s{T+13}, 2047, s{T+13}
    s_ashr_i32 s{T+14}, s{T+6}, 31
    s_or_b32 s{T+14}, s{T+14}, 0x80000000
    s_xor_b32 s{T+6}, s{T+6}, s{T+14}
    s_and_b32 s{T+6}, s{T+6}, 0xffff0000
    s_or_b32 s{T+6}, s{T+6}, s{T+13}
    v_mov_b32 v149, s{T+6}
    v_mov_b32 v146, {MISC}
    s_mov_b64 exec, 1
    ds_max_u64 v146, v[148:149]
    s_mov_b64 exec, -1
    s_waitcnt lgkmcnt(0)
    s_barrier""")
    lc = k.lab("nc")
    k(f"""s_cmp_eq_u32 s{S_WAVE}, 0
    s_cbranch_scc0 {lc}
    ds_read_b64 v[152:153], v146
    s_lshl_b32 s{T+6}, s{S_W}, 4
    s_add_u32 s{T+6}, s{T+6}, {CAND}
    v_mov_b32 v147, 0
    s_waitcnt lgkmcnt(0)
    v_alignbit_b32 v154, s{S_TB}, v152, 16
    v_mov_b32 v155, v153
    v_mov_b32_sdwa v152, s{S_TA} dst_sel:WORD_1 dst_unused:UNUSED_PRESERVE src0_sel:WORD_0
    s_mov_b64 exec, 1
    buffer_store_dwordx4 v[152:155], v147, {sr(R_WS,4)}, s{T+6} offen sc1
    s_mov_b64 exec, -1
    {lc}:""")
    stamp("cand done")
    if stop == "A":
        finish_debug(); k("END:\ns_endpgm"); return k

    LHI = float.fromhex("0x1.7154p+0")
    LLO = (math.log2(math.e) - LHI) * math.log(2.0)
    def exp_acc(dst, src, t):
        k(f"""v_mul_f32 v{dst}, {hex(f2u(LHI))}, {src}
        v_mul_f32 v{t}, {hex(f2u(LLO))}, {src}
        v_exp_f32 v{dst}, v{dst}
        v_fma_f32 v{dst}, v{dst}, v{t}, v{dst}
        v_cvt_pk_bf16_f32 v{dst}, v{dst}, v{dst}
        v_and_b32 v{dst}, 0xffff0000, v{dst}""")
    k(f"s_mov_b32 m0, s{S_M0}\nv_mov_b32 v130, s{S_LDT}")
    exp_acc(128, "v130", 129)
    exp_acc(130, f"v{VP}", 131)
    E1, Y1, E128, B0 = 140, 142, 144, 146
    k(f"""v_mul_f32 v130, v130, v128
    v_mul_f32 v131, v{VP+1}, v128
    v_mul_f32 v130, {hex(f2u(-math.log2(math.e)))}, v130
    v_mul_f32 v131, 0.15915494, v131
    v_add_f32 v128, v128, v128
    v_mul_f32 v{B0}, v{VP+2}, v128
    v_mul_f32 v{B0+1}, v{VP+3}, v128
    v_mul_f32 v132, 0x41000000, v130
    v_mul_f32 v133, 0x41000000, v131
    v_mul_f32 v134, 0x43000000, v130
    v_mul_f32 v135, 0x43000000, v131
    v_fract_f32 v131, v131
    v_fract_f32 v133, v133
    v_fract_f32 v135, v135
    v_exp_f32 v130, v130
    v_exp_f32 v132, v132
    v_exp_f32 v134, v134
    v_cos_f32 v{E1}, v131
    v_sin_f32 v{E1+1}, v131
    v_cos_f32 v{Y1}, v133
    v_sin_f32 v{Y1+1}, v133
    v_cos_f32 v{E128}, v135
    v_sin_f32 v{E128+1}, v135
    v_mov_b32 v136, 0x3f80
    ds_write_addtid_b32 v136 offset:0
    v_pk_mul_f32 {vr(E1,2)}, {vr(E1,2)}, v[130:131] op_sel_hi:[1,0]
    v_pk_mul_f32 {vr(Y1,2)}, {vr(Y1,2)}, v[132:133] op_sel_hi:[1,0] neg_hi:[1,0]
    v_pk_mul_f32 {vr(E128,2)}, {vr(E128,2)}, v[134:135] op_sel_hi:[1,0]""")
    reg = {"E1": E1, "Y1": Y1, "E128": E128, "B0": B0}
    nxt = [148]
    def alloc(name):
        reg[name] = nxt[0]; nxt[0] += 2; assert nxt[0] <= 240
    ops = []
    for i in range(2, 16): ops.append((f"Y{i}", f"Y{i-1}", "Y1", i, 100 - i))
    for q in range(1, 17):
        row = {1: 24, 2: 32, 3: 36, 4: 40, 5: 42, 6: 44, 7: 46}.get(q, 40 + q)
        ops.append((f"B{q}", f"B{q-1}", "E128", row, 200 - q))
    for (n, a, b) in ((2,1,1),(3,2,1),(4,2,2),(5,4,1),(6,4,2),(7,4,3)): ops.append((f"E{n}", f"E{a}", f"E{b}", None, 90 - n))
    for j in range(1, 8): ops.append((f"X0{j}", "B0", f"E{j}", 16 + j, 50))
    for j in range(1, 8): ops.append((f"X1{j}", "B1", f"E{j}", 24 + j, 49))
    for q in (2, 3):
        for jj, j in enumerate((2, 4, 6)): ops.append((f"X{q}{j}", f"B{q}", f"E{j}", 32 + 4*(q-2) + 1 + jj, 48))
    for q in range(4, 8): ops.append((f"X{q}4", f"B{q}", "E4", 40 + 2*(q-4) + 1, 47))
    done = set(reg.keys())
    pend = [("Y1", 1), ("B0", 16)]
    free_pairs = []
    keep = lambda n: n.startswith("E") or n in ("Y1",) or (n[0] == "B" and int(n[1:]) <= 7)
    cv = [240]
    def flush(pl):
        for (n, row) in pl:
            c = cv[0]; cv[0] = 240 + (cv[0] - 240 + 1) % 8
            k(f"v_cvt_pk_bf16_f32 v{c}, v{reg[n]}, v{reg[n]+1}\nds_write_addtid_b32 v{c} offset:{row*ROWB}")
    rem = list(ops)
    TMP = [248, 250, 252, 254]
    retire = []
    while rem:
        ready = sorted([o for o in rem if o[1] in done and o[2] in done], key=lambda o: -o[4])[:4]
        for i, o in enumerate(ready):
            k(f"v_pk_mul_f32 {vr(TMP[i],2)}, {vr(reg[o[1]],2)}, {vr(reg[o[2]],2)} op_sel:[1,1] op_sel_hi:[1,0] neg_lo:[1,0]")
        flush(pend);
        for n in retire: free_pairs.append(reg[n])
        retire = [n for (n, _) in pend if n.startswith("X")]
        pend = []
        for i, o in enumerate(ready):
            if free_pairs: reg[o[0]] = free_pairs.pop()
            else: alloc(o[0])
            k(f"v_pk_fma_f32 {vr(reg[o[0]],2)}, {vr(reg[o[1]],2)}, {vr(reg[o[2]],2)}, {vr(TMP[i],2)} op_sel_hi:[0,1,1]")
            if o[3] is not None: pend.append((o[0], o[3]))
            rem.remove(o)
        for o in ready:
            done.add(o[0])
            if o[0][0] in "YB" and not keep(o[1]): retire.append(o[1])
    flush(pend)
    stamp("kgen done")
    lp = k.lab("np")
    k(f"""s_cmp_lt_u32 s{S_WAVE}, 4
    s_cbranch_scc0 {lp}
    s_mov_b32 s{T+6}, {CAND}
    buffer_load_dwordx4 {vr(V_CD,4)}, v{V_T16}, {sr(R_WS,4)}, s{T+6} offen sc1
    {lp}:""")
    def xt_loads():
        for i in range(4):
            k(f"buffer_load_dwordx4 {vr(V_XT+4*i,4)}, v{V_T16}, {sr(R_WS,4)}, s{S_XO+i} offen sc1")
    xt_loads()
    k("s_waitcnt lgkmcnt(0)\ns_barrier")
    KYB, KXA, KXB, KA0, KA1 = 128, 160, 192, 224, 228
    lb_, lj = k.lab("kb"), k.lab("kj")
    k(f"s_cmp_eq_u32 s{S_ROLE}, 0\ns_cbranch_scc0 {lb_}")
    for s in range(8):
        k(f"ds_read_b128 {vr(KYB+4*s,4)}, v{V_KY} offset:{64*s}")
        k(f"ds_read_b128 {vr(KXA+4*s,4)}, v{V_KY} offset:{16*ROWB + 64*s}")
        k(f"ds_read_b128 {vr(KXB+4*s,4)}, v{V_KX2} offset:{64*s}")
        if s >= 4:
            u = s - 4
            k(f"s_waitcnt lgkmcnt(12)")
            k(f"v_mfma_f32_16x16x32_bf16 {vr(KA0,4)}, {vr(KXA+4*u,4)}, {vr(KYB+4*u,4)}, {vr(KA0,4) if u else 0}")
            k(f"v_mfma_f32_16x16x32_bf16 {vr(KA1,4)}, {vr(KYB+4*u,4)}, {vr(KXB+4*u,4)}, {vr(KA1,4) if u else 0}")
    for u in range(4, 8):
        k(f"s_waitcnt lgkmcnt({3*(7-u)})")
        k(f"v_mfma_f32_16x16x32_bf16 {vr(KA0,4)}, {vr(KXA+4*u,4)}, {vr(KYB+4*u,4)}, {vr(KA0,4)}")
        k(f"v_mfma_f32_16x16x32_bf16 {vr(KA1,4)}, {vr(KYB+4*u,4)}, {vr(KXB+4*u,4)}, {vr(KA1,4)}")
    k(f"""v_cvt_pk_bf16_f32 v232, v{KA0+3}, v{KA0+2}
    v_cvt_pk_bf16_f32 v233, v{KA0+1}, v{KA0}
    v_cvt_pk_bf16_f32 v234, v{KA1}, v{KA1+1}
    v_cvt_pk_bf16_f32 v235, v{KA1+2}, v{KA1+3}""")
    for (va, d) in ((V_KW0, 232), (V_KW1, 234)):
        for u in range(4):
            if u % 2 == 0: k(f"ds_write_b64 v{va}, {vr(d,2)} offset:{u*KCP}")
            else: k(f"ds_write_b32 v{va}, v{d} offset:{u*KCP}\nds_write_b32 v{va}, v{d+1} offset:{u*KCP+4}")
    k(f"s_branch {lj}\n{lb_}:")
    for s in range(8):
        k(f"ds_read_b128 {vr(KYB+4*s,4)}, v{V_KY} offset:{64*s}")
        k(f"ds_read_b128 {vr(KXA+4*s,4)}, v{V_KY} offset:{32*ROWB + 64*s}")
        if s == 6: k("s_waitcnt lgkmcnt(12)\n" + f"v_mfma_f32_16x16x32_bf16 {vr(KA0,4)}, {vr(KXA,4)}, {vr(KYB,4)}, 0")
    for u in range(1, 8):
        k(f"s_waitcnt lgkmcnt({2*(7-u)})")
        k(f"v_mfma_f32_16x16x32_bf16 {vr(KA0,4)}, {vr(KXA+4*u,4)}, {vr(KYB+4*u,4)}, {vr(KA0,4)}")
    k(f"v_cvt_pk_bf16_f32 v232, v{KA0}, v{KA0+1}\nv_cvt_pk_bf16_f32 v233, v{KA0+2}, v{KA0+3}")
    for u in range(4):
        k(f"ds_write_b32 v{V_KW0}, v232 offset:{u*KCP}\nds_write_b32 v{V_KW1}, v233 offset:{u*KCP}")
    k(f"{lj}:")
    stamp("kmfma done")
    l1, l2, l3 = k.lab("cs"), k.lab("cr"), k.lab("co")
    k(f"""s_cmp_lt_u32 s{S_WAVE}, 4
    s_cbranch_scc0 {l1}
    s_mov_b32 s{T+7}, {spin}
    s_waitcnt vmcnt(4)
    {l2}:
    v_cmp_eq_u32_sdwa vcc, v{V_CD}, s{S_TA} src0_sel:WORD_1 src1_sel:DWORD
    v_cmp_eq_u32_sdwa {sr(T+8,2)}, v{V_CD+2}, s{S_TB} src0_sel:WORD_1 src1_sel:DWORD
    s_and_b64 vcc, vcc, {sr(T+8,2)}
    s_cmp_eq_u64 vcc, -1
    s_cbranch_scc1 {l3}
    s_sub_u32 s{T+7}, s{T+7}, 1
    s_cbranch_scc1 {l3}
    buffer_load_dwordx4 {vr(V_CD,4)}, v{V_T16}, {sr(R_WS,4)}, s{T+6} offen sc1
    s_waitcnt vmcnt(0)
    s_branch {l2}
    {l3}:
    s_mov_b32 s{T+8}, 0x05040100
    v_mov_b32 v122, v{V_CD+1}
    v_perm_b32 v{V_CD}, v{V_CD+2}, v{V_CD}, s{T+8}""")
    for m in RED:
        k(f"v_max_u32_dpp v122, v122, v122 {m}")
    k(f"""v_readlane_b32 s{T+8}, v122, 63
    v_mov_b32 v123, {MISC + 16}
    v_cmp_eq_u32 vcc, s{T+8}, v{V_CD+1}
    s_mov_b64 exec, vcc
    ds_max_u64 v123, {vr(V_CD,2)}
    s_mov_b64 exec, -1
    {l1}:
    v_mov_b32 v123, {MISC + 16}
    s_waitcnt lgkmcnt(0)
    s_barrier
    ds_read_b64 v[120:121], v123""")
    le = k.lab("ne")
    k(f"""s_or_b32 s{T+6}, s{S_W}, s{S_WAVE}
    s_cmp_eq_u32 s{T+6}, 0
    s_cbranch_scc0 {le}
    s_lshl_b32 s{T+6}, s{S_TA}, 16
    v_mov_b32 v122, s{T+6}
    v_mov_b32 v123, 0
    s_mov_b64 exec, 1
    buffer_store_dword v122, v123, {sr(R_WS,4)}, 0 offen sc1
    s_mov_b64 exec, -1
    {le}:""")
    if stop == "B":
        k(f"s_waitcnt lgkmcnt(0)")
        finish_debug(); k("END:\ns_endpgm"); return k
    def F(a, e): return V_F + (a*4 + e)*4
    q = []
    def lds(txt, name):
        k(txt); q.append(name)
        assert len(q) <= 15, "too many lds ops"
    def wait(name):
        if name in q:
            i = q.index(name); n = len(q) - 1 - i
            k(f"s_waitcnt lgkmcnt({n})")
            del q[:i+1]
    q.append("idx")
    Z1T, Z2T = 96, 100
    FN1, FN1B, FN2, FN4 = 116, 94, 88, 92
    for e in range(4):
        lds(f"ds_read_b128 {vr(F(0,e),4)}, v{V_Z1} offset:{512-64*e}", f"z1a{e}")
        lds(f"ds_read_b32 v{Z1T+e}, v{V_Z1} offset:{512-64*e+16}", f"z1b{e}")
    for e in range(4):
        lds(f"ds_read_b128 {vr(Z2T+4*e,4)}, v{V_Z2} offset:{32*e}", f"z2{e}")
    wait("idx")
    k(f"""v_readfirstlane_b32 s{S_ST}, v120
    v_readfirstlane_b32 s{S_KEY}, v121
    s_and_b32 s{S_IDX}, s{S_KEY}, 0x7ff
    s_sub_u32 s{S_IDX}, 2047, s{S_IDX}
    s_lshr_b32 s{S_J}, s{S_IDX}, 8
    s_lshl_b32 s{T+6}, s{S_IDX}, 10
    v_lshl_add_u32 v123, v0, 1, s{T+6}
    global_load_short_d16_hi v{V_XS}, v123, {sr(P_X,2)}
    s_add_u32 s{S_IDX}, s{T+6}, s{S_C02}""")
    def align4(dst, src, fifth):
        for p in range(4):
            hi = f"v{src+p+1}" if p < 3 else f"v{fifth}"
            k(f"v_alignbyte_b32 v{dst+p}, {hi}, v{src+p}, v{V_PAR}")
    def perm2(dst, d):
        k(f"""v_perm_b32 v{dst+3}, v{d+1}, v{d}, v{V_S2}
        v_perm_b32 v{dst+2}, v{d+1}, v{d}, v{V_S2+1}
        v_perm_b32 v{dst+1}, v{d+2}, v{d+1}, v{V_S2}
        v_perm_b32 v{dst}, v{d+2}, v{d+1}, v{V_S2+1}""")
    def perm4(dst, d, sel):
        for p in range(4): k(f"v_perm_b32 v{dst+p}, v{d+1}, v{d}, v{sel+p}")
    z4land = lambda a, e: F(7,0) + ((a-2)*4 + e)*2
    z8land = {(4,0): F(6,0), (4,2): F(6,1), (5,0): F(6,2), (5,2): F(6,3), (6,0): Z2T, (6,2): Z2T+4, (7,0): Z2T+8, (7,2): Z2T+12}
    z4l = [(a, e) for a in (2,3) for e in range(4)]
    def z4load(a, e): lds(f"ds_read_b64 {vr(z4land(a,e),2)}, v{V_Z4} offset:{128*(a-2)+16*e}", f"z4{a}{e}")
    def z8load(a, e): lds(f"ds_read_b128 {vr(z8land[(a,e)],4)}, v{V_Z8} offset:{64*(a-4)+8*e}", f"z8{a}{e}")
    for e in range(4):
        wait(f"z1b{e}")
        z4load(*z4l[2*e]); z4load(*z4l[2*e+1])
        align4(F(0,e), F(0,e), Z1T+e)
    for e in range(4):
        wait(f"z2{e}")
        z8load(4 + e//2, 2*(e%2))
        perm2(F(1,e), Z2T+4*e)
    fine = [(f"ds_read_b128 {vr(FN1,4)}, v{V_Z1} offset:0", "f1a"), (f"ds_read_b32 v{FN1B}, v{V_Z1} offset:16", "f1b"),
            (f"ds_read_b128 {vr(FN2,4)}, v{V_Z2} offset:256", "f2"), (f"ds_read_b64 {vr(FN4,2)}, v{V_Z4} offset:256", "f4")]
    for i, (a, e) in enumerate(z4l):
        wait(f"z4{a}{e}")
        if i < 4: z8load(6 + i//2, 2*(i%2))
        else: lds(*fine[i-4])
        perm4(F(a,e), z4land(a,e), V_S4)
    for a in range(4, 8):
        for e in (0, 2):
            wait(f"z8{a}{e}")
            perm4(F(a,e), z8land[(a,e)], V_S8)
            perm4(F(a,e+1), z8land[(a,e)]+2, V_S8)
    wait("f4")
    lf = k.lab("nf")
    k(f"s_cmp_eq_u32 s{S_H}, 0\ns_cbranch_scc0 {lf}")
    align4(FN1, FN1, FN1B)
    perm2(96, FN2)
    perm4(100, FN4, V_S4)
    for p in range(4):
        k(f"""v_bfi_b32 v{F(0,0)+p}, v{V_M+p}, 0, v{F(0,0)+p}
        v_bfi_b32 v{F(1,0)+p}, v{V_M+p}, v{FN1+p}, v{F(1,0)+p}
        v_bfi_b32 v{F(2,0)+p}, v{V_M+p}, v{96+p}, v{F(2,0)+p}
        v_bfi_b32 v{F(4,0)+p}, v{V_M+p}, v{100+p}, v{F(4,0)+p}""")
    k(f"{lf}:")
    stamp("F built")
    l1, l2 = k.lab("xr"), k.lab("xo")
    k(f"s_mov_b32 s{T+7}, {spin}\ns_waitcnt vmcnt(1)\n{l1}:")
    for i in range(4):
        d = V_XT + 4*i
        k(f"v_cmp_eq_u32_sdwa {sr(T+2*(i%2),2) if i else 'vcc'}, v{d+1}, s{S_TA} src0_sel:WORD_1 src1_sel:DWORD")
        k(f"v_cmp_eq_u32_sdwa {sr(T+4,2)}, v{d+3}, s{S_TB} src0_sel:WORD_1 src1_sel:DWORD")
        if i: k(f"s_and_b64 vcc, vcc, {sr(T+2*(i%2),2)}")
        k(f"s_and_b64 vcc, vcc, {sr(T+4,2)}")
    k(f"""s_cmp_eq_u64 vcc, -1
    s_cbranch_scc1 {l2}
    s_sub_u32 s{T+7}, s{T+7}, 1
    s_cbranch_scc1 {l2}""")
    xt_loads()
    k(f"s_waitcnt vmcnt(0)\ns_branch {l1}\n{l2}:")
    stamp("xt ok")
    NL2E = T + 8
    k(f"s_mov_b32 s{NL2E}, {hex(f2u(-math.log2(math.e)))}")
    def norm4(d, X, N, t, keepn):
        k(f"""v_lshlrev_b32 v{t+1}, 16, v{d+3}
        v_and_b32 v{t}, 0xffff0000, v{d+2}
        v_rcp_f32 v{t+1}, v{t+1}
        v_lshlrev_b32 v{X}, 16, v{d}
        v_and_b32 v{X+1}, 0xffff0000, v{d}
        v_lshlrev_b32 v{X+2}, 16, v{d+1}
        v_lshlrev_b32 v{X+3}, 16, v{d+2}
        v_pk_add_f32 {vr(N,2)}, {vr(X,2)}, {vr(t,2)} op_sel_hi:[1,0] neg_lo:[0,1] neg_hi:[0,1]
        v_pk_add_f32 {vr(N+2,2)}, {vr(X+2,2)}, {vr(t,2)} op_sel_hi:[1,0] neg_lo:[0,1] neg_hi:[0,1]
        v_cvt_pk_bf16_f32 v{t+2}, v{N}, v{N+1}
        v_cvt_pk_bf16_f32 v{t+3}, v{N+2}, v{N+3}
        v_lshlrev_b32 v{N}, 16, v{t+2}
        v_and_b32 v{N+1}, 0xffff0000, v{t+2}
        v_lshlrev_b32 v{N+2}, 16, v{t+3}
        v_and_b32 v{N+3}, 0xffff0000, v{t+3}
        v_pk_mul_f32 {vr(N,2)}, {vr(N,2)}, {vr(t,2)} op_sel:[0,1] op_sel_hi:[1,1]
        v_pk_mul_f32 {vr(N+2,2)}, {vr(N+2,2)}, {vr(t,2)} op_sel:[0,1] op_sel_hi:[1,1]
        v_cvt_pk_bf16_f32 v{t+2}, v{N}, v{N+1}
        v_cvt_pk_bf16_f32 v{t+3}, v{N+2}, v{N+3}""")
        if keepn:
            k(f"""v_lshlrev_b32 v{N}, 16, v{t+2}
            v_and_b32 v{N+1}, 0xffff0000, v{t+2}
            v_lshlrev_b32 v{N+2}, 16, v{t+3}
            v_and_b32 v{N+3}, 0xffff0000, v{t+3}""")
    def silu4(G, B):
        k(f"""v_pk_mul_f32 {vr(G,2)}, {vr(B,2)}, {sr(NL2E,2)} op_sel_hi:[1,0]
        v_pk_mul_f32 {vr(G+2,2)}, {vr(B+2,2)}, {sr(NL2E,2)} op_sel_hi:[1,0]""")
        for c in range(4): k(f"v_exp_f32 v{G+c}, v{G+c}")
        k(f"""v_pk_add_f32 {vr(G,2)}, {vr(G,2)}, 1.0 op_sel_hi:[1,0]
        v_pk_add_f32 {vr(G+2,2)}, {vr(G+2,2)}, 1.0 op_sel_hi:[1,0]""")
        for c in range(4): k(f"v_rcp_f32 v{G+c}, v{G+c}")
        k(f"""v_pk_mul_f32 {vr(G,2)}, {vr(G,2)}, {vr(B,2)}
        v_pk_mul_f32 {vr(G+2,2)}, {vr(G+2,2)}, {vr(B+2,2)}""")
    for i in range(4):
        d = V_XT + 4*i
        X, N, t = 96 + 12*(i%2), 100 + 12*(i%2), 104 + 12*(i%2)
        own = (i % 2 == 0)
        norm4(d, X, N, t, own)
        va = V_UA if own else V_UBB
        o = 2048*(i >> 1)
        k(f"""ds_write_b16 v{va}, v{t+2} offset:{o}
        ds_write_b16_d16_hi v{va}, v{t+2} offset:{o+UCH}
        ds_write_b16 v{va}, v{t+3} offset:{o+2*UCH}
        ds_write_b16_d16_hi v{va}, v{t+3} offset:{o+3*UCH}""")
        if own:
            G = V_OG + 8*(i >> 1); C = G + 4
            silu4(G, N)
            k(f"""v_pk_mul_f32 {vr(N,2)}, {vr(N,2)}, {sr(S_D,2)}
            v_pk_mul_f32 {vr(N+2,2)}, {vr(N+2,2)}, {sr(S_D+2,2)}
            v_pk_fma_f32 {vr(C,2)}, {vr(N,2)}, {vr(G,2)}, {vr(X,2)}
            v_pk_fma_f32 {vr(C+2,2)}, {vr(N+2,2)}, {vr(G+2,2)}, {vr(X+2,2)}""")
    stamp("xt consumed")
    lv1 = k.lab("f1")
    PP = 96
    k(f"""s_cmp_eq_u32 s{S_VAL}, 0
    s_cbranch_scc1 {lv1}
    s_and_b32 s{T}, s{S_ST}, 0xffff0000
    s_lshl_b32 s{T+1}, s{S_ST}, 16
    v_rcp_f32 v112, s{T}
    v_lshrrev_b32 v114, 2, v{V_LANE}
    v_lshlrev_b32 v114, 2, v114
    s_lshl_b32 s{T+2}, s{S_WAVE}, 6
    s_add_u32 s{T+2}, s{T+2}, {TT}
    v_add_u32 v114, s{T+2}, v114
    s_waitcnt vmcnt(0)
    v_subrev_f32 v{V_XS}, s{T+1}, v{V_XS}
    v_cvt_pk_bf16_f32 v{V_XS}, v{V_XS}, v{V_XS}
    v_and_b32 v{V_XS}, 0xffff0000, v{V_XS}
    v_mul_f32 v{V_XS}, v{V_XS}, v112
    v_cvt_pk_bf16_f32 v112, v{V_XS}, 0
    v_lshlrev_b32 v113, 16, v112""")
    for i in range(8):
        k(f"v_dot2_f32_bf16 v{PP+i}, v{V_GA+i//2}, v{112+i%2}, 0")
        k(f"v_dot2_f32_bf16 v{PP+8+i}, v{V_UP+i//2}, v{112+i%2}, 0")
    for i in range(8): k(f"v_permlane32_swap_b32 v{PP+i}, v{PP+8+i}")
    for i in range(8): k(f"v_add_f32 v{PP+i}, v{PP+i}, v{PP+8+i}")
    for i in range(4): k(f"v_permlane16_swap_b32 v{PP+i}, v{PP+4+i}")
    for i in range(4): k(f"v_add_f32 v{PP+i}, v{PP+i}, v{PP+4+i}")
    k(f"""v_add_f32_dpp v{PP}, v{PP}, v{PP} row_ror:8 row_mask:0xf bank_mask:0x3
    v_add_f32_dpp v{PP+1}, v{PP+1}, v{PP+1} row_ror:8 row_mask:0xf bank_mask:0x3
    v_add_f32_dpp v{PP}, v{PP+2}, v{PP+2} row_ror:8 row_mask:0xf bank_mask:0xc
    v_add_f32_dpp v{PP+1}, v{PP+3}, v{PP+3} row_ror:8 row_mask:0xf bank_mask:0xc
    v_add_f32_dpp v{PP+2}, v{PP}, v{PP} row_half_mirror row_mask:0xf bank_mask:0x5
    v_add_f32_dpp v{PP+2}, v{PP+1}, v{PP+1} row_half_mirror row_mask:0xf bank_mask:0xa
    v_add_f32_dpp v{PP+2}, v{PP+2}, v{PP+2} quad_perm:[1,0,3,2] row_mask:0xf bank_mask:0xf
    v_add_f32_dpp v{PP+2}, v{PP+2}, v{PP+2} quad_perm:[2,3,0,1] row_mask:0xf bank_mask:0xf
    ds_write_b32 v114, v{PP+2}
    {lv1}:
    s_waitcnt lgkmcnt(0)
    s_barrier""")
    stamp("B5")
    if stop == "C":
        finish_debug(); k("END:\ns_endpgm"); return k
    def ffn2():
        lv2 = k.lab("f2")
        k(f"""s_cmp_eq_u32 s{S_VAL}, 0
        s_cbranch_scc1 {lv2}
        v_lshlrev_b32 v4, 2, v{V_LANE}
        v_add_u32 v4, {TT}, v4
        ds_read2_b32 v[2:3], v4 offset0:0 offset1:64
        v_lshrrev_b32 v6, 2, v0
        v_mul_u32_u24 v6, 5504, v6
        v_and_b32 v7, 3, v0
        v_lshl_add_u32 v6, v7, 3, v6
        s_lshl_b32 s{T}, s{S_SL}, 5
        s_add_u32 s{T}, s{T}, {PART}
        v_mov_b32 v9, s{S_T32}
        s_waitcnt lgkmcnt(0)
        v_add_f32 v2, v2, v3
        v_mov_b32 v3, v2
        v_permlane32_swap_b32 v2, v3
        v_add_f32 v2, v2, v3
        v_mov_b32 v3, v2
        v_permlane16_swap_b32 v2, v3
        v_add_f32 v2, v2, v3
        v_cvt_pk_bf16_f32 v2, v2, v2
        v_and_b32 v2, 0xffff0000, v2
        v_mul_f32 v3, s{NL2E}, v2
        v_exp_f32 v3, v3
        v_add_f32 v3, 1.0, v3
        v_rcp_f32 v3, v3
        v_mul_f32 v3, v3, v2
        v_cvt_pk_bf16_f32 v3, v3, v3
        v_and_b32 v3, 0xffff0000, v3
        v_mul_f32_dpp v3, v2, v3 row_ror:8 row_mask:0xf bank_mask:0xf
        v_cvt_pk_bf16_f32 v3, v3, v3
        v_and_b32 v3, 0xffff0000, v3""")
        hs = [T+1, T+2, T+3, T+4, T+5, T+6, T+7, T+10]
        for f in range(8): k(f"v_readlane_b32 s{hs[f]}, v3, {f}")
        k(f"v_mul_f32 v8, s{hs[0]}, v{V_WD}")
        for f in range(1, 8): k(f"v_fmac_f32 v8, s{hs[f]}, v{V_WD+f}")
        k(f"buffer_store_dwordx2 v[8:9], v6, {sr(R_WS,4)}, s{T} offen sc1\n{lv2}:")
    ffn2()
    stamp("ffn2")
    S_OWNW = T + 13
    k(f"""s_lshr_b32 s{T}, s{S_J}, 1
    s_xor_b32 s{T}, s{T}, s{S_J}
    s_and_b32 s{T}, s{T}, 1
    s_bfe_u32 s{T+1}, s{S_IDX}, 0x30010
    s_lshl_b32 s{T}, s{T}, 3
    s_or_b32 s{T}, s{T}, s{T+1}
    s_lshl_b32 s{T+1}, s{S_HF}, 3
    s_or_b32 s{T+1}, s{T+1}, s{S_WAVE}
    s_cmp_eq_u32 s{T}, s{T+1}
    s_cselect_b32 s{S_OWNW}, 1, 0""")
    PL = 192
    PRD = 2
    def part_loads():
        k(f"""s_mul_i32 s{T}, s{S_CG}, 5504
        s_add_u32 s{T}, s{T}, {PART}
        v_lshlrev_b32 v16, 4, v{V_LANE}""")
        for i in range(4):
            k(f"buffer_load_dwordx4 {vr(PL+4*i,4)}, v16, {sr(R_WS,4)}, s{T} offen offset:{1024*i} sc1")
        k(f"""s_add_u32 s{T}, s{T}, 4096
        buffer_load_dwordx4 {vr(PL+16,4)}, v16, {sr(R_WS,4)}, s{T} offen sc1
        s_mov_b64 exec, 0xffffff
        buffer_load_dwordx4 {vr(PL+20,4)}, v16, {sr(R_WS,4)}, s{T} offen offset:1024 sc1
        s_mov_b64 exec, -1""")
    def conv(tiles):
        jA, jB, jC, jD = tiles
        acc = {"A": V_ACC, "B": V_ACC+4, "C": V_ACC, "D": V_ACC+8}
        steps = []
        for s in range(jA, -1, -1):
            for e in range(4): steps.append((s, e, [("A", jA-s)]))
        endA = len(steps)
        for s in range(jB, -1, -1):
            for e in range(4): steps.append((s, e, [("B", jB-s)]))
        endB = len(steps)
        for s in range(jC, -1, -1):
            for e in range(4): steps.append((s, e, [("C", jC-s), ("D", jD-s)]))
        endC = len(steps)
        for s in range(jD, jC, -1):
            for e in range(4): steps.append((s, e, [("D", jD-s)]))
        endD = len(steps)
        NB = 6; PF = 5
        del q[:]
        def gload(i):
            s, e, _ = steps[i]
            lds(f"ds_read_b128 {vr(V_GB+4*(i%NB),4)}, v{V_G} offset:{512*s+64*(3-e)}", f"g{i}")
        def pw(t, buf): lds(f"ds_write_b128 v{V_PW}, {vr(acc[t],4)} offset:{buf*10240}", f"pw{t}")
        def bar_rd(t, buf):
            wait(f"pw{t}"); k("s_barrier")
            for h in range(2):
                for c in range(2):
                    o = 40*buf + 20*h + 10*c
                    lds(f"ds_read2st64_b32 {vr(PRD+4*h+2*c,2)}, v{V_PR} offset0:{o} offset1:{o+5}", f"pr{t}{h}{c}")
        def epi(t, j):
            own = 0 if t in "AC" else 1
            slot = 0 if t in "AB" else 1
            G = V_OG + 8*slot; C = G + 4
            le_, ls_ = k.lab("ep"), k.lab("es")
            wait(f"pr{t}11")
            k(f"""s_cmp_eq_u32 s{S_OWN}, {own}
            s_cbranch_scc0 {le_}
            v_pk_add_f32 {vr(PRD,2)}, {vr(PRD,2)}, {vr(PRD+4,2)}
            v_pk_add_f32 {vr(PRD+2,2)}, {vr(PRD+2,2)}, {vr(PRD+6,2)}
            s_sub_u32 s{T}, s{S_IDX}, {j*262144}
            s_mov_b32 s{T+1}, {j*262144}
            v_cmp_ne_u32 vcc, s{T}, v{V_OUT}
            v_pk_fma_f32 {vr(PRD+4,2)}, {vr(PRD,2)}, {vr(G,2)}, {vr(C,2)}
            v_pk_fma_f32 {vr(PRD+6,2)}, {vr(PRD+2,2)}, {vr(G+2,2)}, {vr(C+2,2)}
            v_cvt_pk_bf16_f32 v10, v{PRD+4}, v{PRD+5}
            v_cvt_pk_bf16_f32 v11, v{PRD+6}, v{PRD+7}
            s_mov_b64 exec, vcc
            buffer_store_dwordx2 v[10:11], v{V_OUT}, {sr(R_OUT,4)}, s{T+1} offen
            s_mov_b64 exec, -1
            s_cmp_eq_u32 s{S_J}, {j}
            s_cbranch_scc0 {le_}""")
            for c in range(4): k(f"v_mov_b32 v{V_SV+c}, v{PRD+c}\nv_mov_b32 v{V_SV+4+c}, v{V_XT+8*slot+c}")
            k(f"{le_}:")
        ev = {}
        def at(i, fn): ev.setdefault(min(i, endD), []).append(fn)
        at(endA+1, lambda: pw("A", 0)); at(endA+3, lambda: bar_rd("A", 0)); at(endA+6, lambda: epi("A", jA))
        at(endB+1, lambda: pw("B", 1)); at(endB+3, lambda: bar_rd("B", 1)); at(endB+6, lambda: epi("B", jB))
        def pl():
            lp_ = k.lab("pl")
            k(f"""s_cmp_eq_u32 s{S_OWNW}, 0
            s_cbranch_scc1 {lp_}
            v_mov_b32 v{PL+20}, 0
            v_mov_b32 v{PL+21}, s{S_T32}
            v_mov_b32 v{PL+22}, 0
            v_mov_b32 v{PL+23}, s{S_T32}""")
            part_loads()
            k(f"{lp_}:")
        at(endC+1, pl)
        at(endC+1, lambda: pw("C", 0)); at(endC+3, lambda: bar_rd("C", 0)); at(endC+6, lambda: epi("C", jC))
        at(endD, lambda: pw("D", 1)); at(endD, lambda: bar_rd("D", 1)); at(endD, lambda: epi("D", jD))
        first = set()
        for i in range(min(PF, endD)): gload(i)
        for i in range(endD):
            for fn in ev.get(i, []): fn()
            wait(f"g{i}")
            g = V_GB + 4*(i % NB)
            for (t, a) in steps[i][2]:
                c = vr(acc[t],4) if t in first else "0"
                first.add(t)
                k(f"v_mfma_f32_16x16x32_bf16 {vr(acc[t],4)}, {vr(F(a,steps[i][1]),4)}, {vr(g,4)}, {c}")
            if i + PF < endD: gload(i + PF)
        for fn in ev.get(endD, []): fn()
    lh1, lfin = k.lab("h1"), k.lab("fin")
    k(f"s_cmp_eq_u32 s{S_HF}, 0\ns_cbranch_scc0 {lh1}")
    conv((0, 3, 4, 7))
    k(f"s_branch {lfin}\n{lh1}:")
    conv((1, 2, 5, 6))
    k(f"{lfin}:")
    stamp("conv done")
    ldone, l1, l2 = k.lab("dn"), k.lab("pr"), k.lab("po")
    k(f"""s_cmp_eq_u32 s{S_OWNW}, 0
    s_cbranch_scc1 {ldone}
    s_mov_b32 s{T+7}, {spin}
    s_waitcnt vmcnt(1)
    {l1}:
    v_cmp_eq_u32 vcc, s{S_T32}, v{PL+1}""")
    for i in range(1, 12):
        k(f"v_cmp_eq_u32 {sr(T+2*(i%2),2)}, s{S_T32}, v{PL+2*i+1}\ns_and_b64 vcc, vcc, {sr(T+2*(i%2),2)}")
    k(f"""s_cmp_eq_u64 vcc, -1
    s_cbranch_scc1 {l2}
    s_sub_u32 s{T+7}, s{T+7}, 1
    s_cbranch_scc1 {l2}""")
    part_loads()
    k(f"s_waitcnt vmcnt(0)\ns_branch {l1}\n{l2}:")
    for i in range(1, 6):
        k(f"v_add_f32 v{PL}, v{PL}, v{PL+4*i}\nv_add_f32 v{PL+2}, v{PL+2}, v{PL+4*i+2}")
    for m in ("quad_perm:[2,3,0,1]", "row_ror:4", "row_ror:8"):
        k(f"v_add_f32_dpp v{PL}, v{PL}, v{PL} {m} row_mask:0xf bank_mask:0xf\nv_add_f32_dpp v{PL+2}, v{PL+2}, v{PL+2} {m} row_mask:0xf bank_mask:0xf")
    for sw in ("v_permlane32_swap_b32", "v_permlane16_swap_b32"):
        k(f"""v_mov_b32 v{PL+1}, v{PL}
        v_mov_b32 v{PL+3}, v{PL+2}
        {sw} v{PL}, v{PL+1}
        {sw} v{PL+2}, v{PL+3}
        v_add_f32 v{PL}, v{PL}, v{PL+1}
        v_add_f32 v{PL+2}, v{PL+2}, v{PL+3}""")
    X, N, t, Y, G = 96, 100, 104, 108, 112
    k(f"""v_cvt_pk_bf16_f32 v{PL}, v{PL}, v{PL+2}
    s_ashr_i32 s{T+2}, s{S_KEY}, 31
    s_not_b32 s{T+2}, s{T+2}
    s_or_b32 s{T+2}, s{T+2}, 0x80000000
    s_xor_b32 s{T+2}, s{T+2}, s{S_KEY}
    s_and_b32 s{T+2}, s{T+2}, 0xffff0000
    v_readlane_b32 s{T}, v{PL}, 0
    v_readlane_b32 s{T+1}, v{PL}, 1
    v_mov_b32 v{G}, s{T+2}
    v_mul_f32 v{G}, s{NL2E}, v{G}
    v_exp_f32 v{G}, v{G}
    v_add_f32 v{G}, 1.0, v{G}
    v_rcp_f32 v{G}, v{G}
    v_cvt_pk_bf16_f32 v{G}, v{G}, v{G}
    v_and_b32 v{G}, 0xffff0000, v{G}
    s_lshl_b32 s{T+2}, s{T}, 16
    s_and_b32 s{T+3}, s{T}, 0xffff0000
    s_lshl_b32 s{T+4}, s{T+1}, 16
    s_and_b32 s{T+5}, s{T+1}, 0xffff0000
    v_pk_mul_f32 {vr(Y,2)}, {vr(G,2)}, {sr(T+2,2)} op_sel_hi:[0,1]
    v_pk_mul_f32 {vr(Y+2,2)}, {vr(G,2)}, {sr(T+4,2)} op_sel_hi:[0,1]
    v_cvt_pk_bf16_f32 v{G}, v{Y}, v{Y+1}
    v_cvt_pk_bf16_f32 v{G+1}, v{Y+2}, v{Y+3}
    v_lshlrev_b32 v{Y}, 16, v{G}
    v_and_b32 v{Y+1}, 0xffff0000, v{G}
    v_lshlrev_b32 v{Y+2}, 16, v{G+1}
    v_and_b32 v{Y+3}, 0xffff0000, v{G+1}""")
    norm4(V_SV+4, X, N, t, True)
    k(f"""v_pk_add_f32 {vr(Y,2)}, {vr(Y,2)}, {vr(N,2)}
    v_pk_add_f32 {vr(Y+2,2)}, {vr(Y+2,2)}, {vr(N+2,2)}
    v_cvt_pk_bf16_f32 v{G}, v{Y}, v{Y+1}
    v_cvt_pk_bf16_f32 v{G+1}, v{Y+2}, v{Y+3}
    v_lshlrev_b32 v{Y}, 16, v{G}
    v_and_b32 v{Y+1}, 0xffff0000, v{G}
    v_lshlrev_b32 v{Y+2}, 16, v{G+1}
    v_and_b32 v{Y+3}, 0xffff0000, v{G+1}""")
    silu4(G, Y)
    k(f"""v_pk_fma_f32 {vr(N,2)}, {vr(N,2)}, {sr(S_D,2)}, {vr(V_SV,2)}
    v_pk_fma_f32 {vr(N+2,2)}, {vr(N+2,2)}, {sr(S_D+2,2)}, {vr(V_SV+2,2)}
    s_lshl_b32 s{T+1}, s{S_J}, 18
    s_sub_u32 s{T}, s{S_IDX}, s{T+1}
    v_cmp_eq_u32 vcc, s{T}, v{V_OUT}
    v_pk_fma_f32 {vr(N,2)}, {vr(N,2)}, {vr(G,2)}, {vr(X,2)}
    v_pk_fma_f32 {vr(N+2,2)}, {vr(N+2,2)}, {vr(G+2,2)}, {vr(X+2,2)}
    v_cvt_pk_bf16_f32 v10, v{N}, v{N+1}
    v_cvt_pk_bf16_f32 v11, v{N+2}, v{N+3}
    s_mov_b64 exec, vcc
    buffer_store_dwordx2 v[10:11], v{V_OUT}, {sr(R_OUT,4)}, s{T+1} offen
    s_mov_b64 exec, -1
    {ldone}:""")
    if stamps and rt:
        k("s_waitcnt vmcnt(0)")
        stamp("end")
        k(f"""s_load_dwordx2 {sr(T,2)}, s[0:1], 104
        s_mov_b32 s{T+2}, 256
        s_mov_b32 s{T+3}, 0x00020000
        v_lshlrev_b32 v2, 2, v{V_LANE}
        s_waitcnt lgkmcnt(0)""")
        n = nst[0]
        for i in range(n):
            k(f"v_writelane_b32 v3, s{S_STAMP+2*i}, {i}")
        k(f"s_not_b32 s{T+4}, s{S_STAMP}\nv_writelane_b32 v3, s{T+4}, {n}\ns_not_b32 s{T+4}, s{S_STAMP+2*n-2}\nv_writelane_b32 v3, s{T+4}, {n+1}")
        k(f"s_mov_b64 exec, {(1 << (n+2)) - 1}\nbuffer_atomic_umax v3, v2, {sr(T,4)}, 0 offen sc1")
    elif stamps:
        k("s_waitcnt vmcnt(0)")
        stamp("end")
        k(f"""s_waitcnt lgkmcnt(0)
        s_lshl_b32 s{T}, s{S_W}, 3
        s_add_u32 s{T}, s{T}, s{S_WAVE}
        s_lshl_b32 s{T}, s{T}, 7
        s_add_u32 s{T}, s{T}, {DBGT}
        v_lshlrev_b32 v2, 2, v{V_LANE}""")
        for i in range(2*nst[0]):
            k(f"v_writelane_b32 v3, s{S_STAMP+i}, {i}")
        k(f"s_mov_b64 exec, {(1 << (2*nst[0])) - 1}\nbuffer_store_dword v3, v2, {sr(R_WS,4)}, s{T} offen")
    k("s_waitcnt vmcnt(0)\nEND:\ns_endpgm")
    return k

HEADER = open("cdna_kernels/" + KN + ".s.ref").read().split("; Override launch")[0] if __name__ == "__main__" else ""
def emit(path, **kw):
    k = gen(**kw)
    k.L = hz.insert_nops(k.L, verbose=True)
    open(path, "w").write(module([k]))
    return k

if __name__ == "__main__":
    import argparse
    ap = argparse.ArgumentParser()
    ap.add_argument("out"); ap.add_argument("--stop"); ap.add_argument("--stamps", action="store_true")
    ap.add_argument("--spin", type=int, default=SPIN); ap.add_argument("--rt", action="store_true"); ap.add_argument("--sel")
    a = ap.parse_args()
    kk = emit(a.out, stop=a.stop, stamps=a.stamps, spin=a.spin, rt=a.rt, sel=(a.sel.split(",") if a.sel else None))
    print(kk.stamp_names)
```

```python
import sys, struct, math
sys.path.insert(0, "work")
from asmlib import *
import hz

def f2u(f): return struct.unpack("<I", struct.pack("<f", f))[0]
def vr(a, n=1): return f"v{a}" if n == 1 else f"v[{a}:{a+n-1}]"
def sr(a, n=1): return f"s{a}" if n == 1 else f"s[{a}:{a+n-1}]"

STG = 0; ROWB = 1056; PAIRB = 57 * ROWB
PBUF = 0; TT = 20480
UB = 120384; UCH = 4608
KA = 138816; KCH = 6192; KCP = 1548
Z1O, V8O, V2O, V4O = 0, 624, 928, 1240
LNB = KA
MISC = 163584
LDS_BYTES = 163840
CAND = 0x1000; XT = 0x100000; PART = 0x600000; DBG = 0x1000000; DBGV = 0x4000000; DBGT = 0x800000
S_W, S_WAVE = 2, 3
P_X, P_LAR, P_AIM, P_CRE, P_CIM, P_LDT, P_DSK = 4, 6, 8, 10, 12, 14, 16
P_WR, P_WG, P_WU, P_WD = 20, 22, 24, 26
R_OUT, R_WS = 28, 32
S_C02, S_CG, S_HF, S_SL, S_TA, S_TB, S_T32, S_VAL = 36, 37, 38, 39, 40, 41, 42, 43
S_LDT, S_DSK, S_EP, S_CH, S_H, S_OWN = 44, 46, 48, 49, 50, 51
S_D = 52
S_XO = 56
S_IDX, S_ST, S_KEY, S_J = 60, 61, 62, 63
T = 64
S_STAMP = 80
V_TID, V_LANE = 0, 1
V_M = 2
V_PAR = 6; V_S2 = 7; V_S4 = 9; V_S8 = 13
V_Z1, V_Z2, V_Z4, V_Z8 = 17, 18, 19, 20
V_G, V_PW, V_PR, V_OUT, V_UA, V_UBB, V_T16 = 21, 22, 23, 24, 25, 26, 27
V_GA, V_UP, V_WD, V_XS, V_FO = 28, 32, 36, 44, 45
V_WDO = 46
V_XT = 48
V_CD = 64
V_OG = 68
V_ACC = 84
V_KY, V_KX2, V_KW0, V_KW1 = 84, 85, 86, 87
V_GB = 96
V_SV = 120
V_F = 128
SPIN = 2000

def gen(stop=None, stamps=False, spin=SPIN, dumpv=None, rt=False, sel=None, opt=None):
    k = Kern(KN + "_kernel", 256, 512, LDS_BYTES, vgpr=256, sgpr=102)
    nst = [0]; k.stamp_names = []; opt = opt or {}
    def stamp(name=""):
        if stamps and nst[0] < 11 and (sel is None or name in sel):
            k(f"{'s_memrealtime' if rt else 's_memtime'} {sr(S_STAMP + 2*nst[0], 2)} ; stamp {nst[0]} {name}")
            nst[0] += 1; k.stamp_names.append(name)
    def finish_debug():
        k("s_waitcnt vmcnt(0) lgkmcnt(0)\ns_barrier")
        if dumpv is not None:
            a, n = dumpv
            k(f"s_lshl_b32 s{T}, s{S_W}, 9\nv_add_u32 v{255}, s{T}, v0" if a + n <= 255 else "")
            k(f"s_mov_b32 s{T+1}, {n*4}\nv_mul_lo_u32 v255, v255, s{T+1}\ns_mov_b32 s{T+2}, {DBGV}")
            for i in range(n):
                k(f"buffer_store_dword v{a+i}, v255, {sr(R_WS,4)}, s{T+2} offen offset:{4*i}")
            k("s_waitcnt vmcnt(0)")
        k(f"v_lshlrev_b32 v2, 4, v0\ns_mul_i32 s{T}, s{S_W}, {LDS_BYTES}\ns_add_u32 s{T}, s{T}, {DBG}")
        for i in range(20):
            k(f"v_add_u32 v3, {i*8192}, v2\nds_read_b128 v[4:7], v3\ns_waitcnt lgkmcnt(0)\nbuffer_store_dwordx4 v[4:7], v3, {sr(R_WS,4)}, s{T} offen\ns_waitcnt vmcnt(0)")
        k("s_endpgm")

    k(f"s_cmp_ge_u32 s{S_W}, 256\ns_cbranch_scc1 END")
    stamp("start")
    k(f"""s_load_dwordx16 s[4:19], s[0:1], 0
    s_load_dwordx8 s[20:27], s[0:1], 64
    s_load_dwordx2 {sr(R_OUT,2)}, s[0:1], 96
    s_load_dwordx2 {sr(R_WS,2)}, s[0:1], 112""")
    if opt.get("pf", 0):
        k(f"""s_getpc_b64 s[76:77]
        PCL:
        v_lshlrev_b32 v48, 7, v0
        v_cmp_gt_u32 vcc, END-PCL, v48
        s_cbranch_vccz NOPF
        v_min_u32 v48, END-PCL, v48
        global_load_dword v48, v48, s[76:77]
        NOPF:""")
    k(f"""v_readfirstlane_b32 s{S_WAVE}, v0
    s_and_b32 s{T}, s{S_W}, 7
    s_lshr_b32 s{T+1}, s{S_W}, 4
    s_lshl_b32 s{S_CG}, s{T}, 4
    s_add_u32 s{S_CG}, s{S_CG}, s{T+1}
    s_lshl_b32 s{S_C02}, s{S_CG}, 3
    s_bfe_u32 s{S_HF}, s{S_W}, 0x10003
    s_lshr_b32 s{T+2}, s{S_W}, 6
    s_lshl_b32 s{T+2}, s{T+2}, 3
    s_add_u32 s{T+2}, s{T+2}, s{T}
    s_lshl_b32 s{T+2}, s{T+2}, 3
    s_bfe_u32 s{T+3}, s{S_W}, 0x30003
    s_add_u32 s{S_SL}, s{T+2}, s{T+3}
    s_cmp_lt_u32 s{S_SL}, 172
    s_cselect_b32 s{S_VAL}, 2752, 0
    s_cselect_b32 s{S_SL}, s{S_SL}, 0
    s_cselect_b32 s{T+4}, 2, 0
    s_lshr_b32 s{S_WAVE}, s{S_WAVE}, 6
    s_lshr_b32 s{S_CH}, s{S_WAVE}, 1
    s_and_b32 s{S_H}, s{S_WAVE}, 1
    s_lshr_b32 s{S_OWN}, s{S_WAVE}, 2
    s_xor_b32 s{S_OWN}, s{S_OWN}, s{S_HF}
    s_lshl_b32 s{T+5}, s{S_W}, 13
    s_lshl_b32 s{T+6}, s{S_C02}, 7
    s_lshl_b32 s{T+7}, s{S_SL}, 4
    s_lshl_b32 s{T+8}, s{S_SL}, 13
    s_add_u32 s{T+8}, s{T+8}, 4096
    v_lshlrev_b32 v{V_T16}, 4, v0
    v_and_b32 v{V_LANE}, 63, v0""")
    VX, VWR, VP = 92, 96, 100
    k(f"""v_add_u32 v104, s{T+5}, v{V_T16}
    v_lshl_add_u32 v105, v0, 1, s{T+6}
    v_lshlrev_b32 v106, 4, v{V_LANE}
    v_mul_u32_u24 v{V_FO}, s{S_VAL}, v0
    v_add_u32 v{V_FO}, s{T+7}, v{V_FO}
    v_mul_u32_u24 v{V_WDO}, s{T+4}, v0
    v_add_u32 v{V_WDO}, s{T+8}, v{V_WDO}""")
    for i in range(4): k(f"v_mov_b32 v{VP+i}, 0")
    k(f"""s_waitcnt lgkmcnt(0)
    global_load_dwordx4 {vr(VX,4)}, v104, {sr(P_X,2)}
    global_load_short_d16_hi v{VP}, v105, {sr(P_LAR,2)}
    global_load_short_d16_hi v{VP+1}, v105, {sr(P_AIM,2)}
    global_load_short_d16_hi v{VP+2}, v105, {sr(P_CRE,2)}
    global_load_short_d16_hi v{VP+3}, v105, {sr(P_CIM,2)}
    global_load_dwordx4 {vr(VWR,4)}, v106, {sr(P_WR,2)}
    s_load_dword s{S_EP}, {sr(R_WS,2)}, 0
    s_load_dwordx2 {sr(S_LDT,2)}, {sr(P_LDT,2)}, s{S_C02}
    s_load_dwordx2 {sr(S_DSK,2)}, {sr(P_DSK,2)}, s{S_C02}
    s_mov_b32 s{R_OUT+2}, {SIZE['out']}
    s_mov_b32 s{R_OUT+3}, 0x00020000
    s_mov_b32 s{R_WS+2}, {SIZE['ws']}
    s_mov_b32 s{R_WS+3}, 0x00020000""")
    stamp("loads issued")
    for i in range(8): k(f"v_mov_b32 v{V_WD+i}, 0")
    k(f"v_mov_b32 v{V_XS}, 0")
    B_, KG, Z, ZZ = 104, 105, 106, 107
    k(f"""v_and_b32 v{B_}, 15, v0
    v_lshrrev_b32 v{KG}, 4, v{V_LANE}
    v_lshlrev_b32 v108, 3, v{KG}
    v_sub_u32 v{Z}, v{B_}, v108
    v_add_u32 v{Z}, 16, v{Z}
    v_and_b32 v{ZZ}, 0xffff, v{Z}
    v_lshl_or_b32 v{ZZ}, v{Z}, 16, v{ZZ}""")
    k(f"""v_lshrrev_b32 v108, 7, v0
    v_and_b32 v109, 127, v0
    v_mul_u32_u24 v108, {UCH}, v108
    v_lshl_add_u32 v108, v109, 2, v108
    v_add_u32 v108, {UB}, v108
    v_mov_b32 v110, 0
    ds_write_b32 v108, v110
    v_and_b32 v109, 15, v0
    v_lshlrev_b32 v109, 2, v109
    v_add_u32 v109, {MISC}, v109
    ds_write_b32 v109, v110""")
    for p in range(4):
        k(f"s_mov_b32 s{T+p}, {(2*p) | ((2*p+1) << 16)}")
    for p in range(4):
        k(f"v_pk_sub_u16 v{V_M+p}, v{ZZ}, s{T+p}")
    for p in range(4):
        k(f"v_pk_ashrrev_i16 v{V_M+p}, 15, v{V_M+p} op_sel_hi:[0,1]")
    k(f"s_mul_i32 s{T+4}, s{S_CH}, {KCH}\ns_add_u32 s{T+4}, s{T+4}, {KA}\ns_mov_b32 s{T+5}, {KCP}")
    k(f"""v_sub_u32 v108, 287, v{Z}
    v_and_b32 v{V_PAR}, 1, v108
    v_lshlrev_b32 v{V_PAR}, 1, v{V_PAR}
    v_bfe_u32 v109, v108, 1, 2
    v_and_b32 v108, -2, v108
    s_lshl_b32 s{T+6}, s{S_H}, 8
    s_sub_u32 s{T+6}, s{T+4}, s{T+6}
    s_sub_u32 s{T+6}, s{T+6}, 512
    v_lshl_add_u32 v108, v108, 1, s{T+6}
    v_mad_u32_u24 v{V_Z1}, v109, s{T+5}, v108""")
    OF = 112
    k(f"v_cvt_f32_i32 v{OF}, v{Z}")
    for i in range(1, 8):
        k(f"v_subrev_f32 v{OF+i}, {hex(f2u(float(i)))}, v{OF}")
    k(f"v_mov_b32 v120, 0x4b400000\ns_mov_b32 s{T+7}, 0x05040100\ns_mov_b32 s{T+8}, 0x02020202")
    GG = 128
    for (step, ilist, selbase, vz, off, hmul, umask) in ((2, [4,5,6,7], V_S2, V_Z2, V2O-240+256, 128, 2), (4, list(range(8)), V_S4, V_Z4, V4O-240+256, 64, 1), (8, list(range(8)), V_S8, V_Z8, V8O-240+256, 32, 2)):
        k(f"s_mov_b32 s{T+9}, {hex(f2u(1.0/step))}")
        for i in ilist:
            k(f"v_fma_f32 v{GG+i}, v{OF+i}, s{T+9}, v120")
        k(f"""v_and_b32 v121, -2, v{GG+7}
        v_subrev_u32 v121, 0x4b400000, v121
        v_mul_i32_i24 v122, 0x0202, v121
        v_sub_u32 v122, 0x0100, v122
        v_perm_b32 v122, v122, v122, s{T+7}
        v_bfe_u32 v123, v121, 1, {umask}
        s_mul_i32 s{T+10}, s{S_H}, {hmul}
        s_add_u32 s{T+10}, s{T+10}, s{T+4}
        s_add_u32 s{T+10}, s{T+10}, {off}
        v_lshl_add_u32 v121, v121, 1, s{T+10}
        v_mad_u32_u24 v{vz}, v123, s{T+5}, v121""")
        if step == 2:
            pl = [(3, selbase), (2, selbase+1)]
        else:
            pl = [(p, selbase+p) for p in range(4)]
        for p, dst in pl:
            k(f"v_perm_b32 v{dst}, v{GG+2*p+1}, v{GG+2*p}, s{T+7}")
        for p, dst in pl:
            k(f"v_pk_mad_u16 v{dst}, v{dst}, s{T+8}, v122")
    k(f"""s_mul_i32 s{T+6}, s{S_CH}, {UCH}
    s_lshl_b32 s{T+9}, s{S_H}, 8
    s_sub_u32 s{T+6}, s{T+6}, s{T+9}
    s_add_u32 s{T+6}, s{T+6}, {UB + 512 - 32 - 192}
    v_lshlrev_b32 v108, 4, v{KG}
    v_lshl_add_u32 v108, v{B_}, 5, v108
    v_add_u32 v{V_G}, s{T+6}, v108
    s_lshl_b32 s{T+6}, s{S_H}, 2
    s_add_u32 s{T+6}, s{T+6}, s{S_CH}
    s_mul_i32 s{T+6}, s{T+6}, 1280
    v_mul_u32_u24 v108, 288, v{KG}
    v_lshl_add_u32 v108, v{B_}, 4, v108
    v_add_u32 v{V_PW}, s{T+6}, v108
    v_bfe_u32 v108, v0, 2, 2
    v_mul_u32_u24 v108, 288, v108
    v_and_b32 v109, 0xf0, v0
    v_add_u32 v108, v108, v109
    v_and_b32 v109, 3, v0
    v_lshl_add_u32 v{V_PR}, v109, 2, v108
    v_and_b32 v108, 255, v0
    v_lshlrev_b32 v108, 10, v108
    v_add_u32 v{V_OUT}, s{S_C02}, v108
    s_lshl_b32 s{T+6}, s{S_OWN}, 10
    s_add_u32 s{T+9}, s{T+6}, {UB + 512}
    v_lshl_add_u32 v{V_UA}, v0, 1, s{T+9}
    s_sub_u32 s{T+9}, {UB + 512 + 1024}, s{T+6}
    v_lshl_add_u32 v{V_UBB}, v0, 1, s{T+9}""")
    k(f"""s_lshl_b32 s{T+6}, s{S_CG}, 15
    s_add_u32 s{T+6}, s{T+6}, {XT}
    s_lshl_b32 s{T+9}, s{S_OWN}, 13
    s_add_u32 s{S_XO}, s{T+6}, s{T+9}
    s_add_u32 s{S_XO+2}, s{S_XO}, 16384
    s_xor_b32 s{T+9}, s{T+9}, 8192
    s_add_u32 s{S_XO+1}, s{T+6}, s{T+9}
    s_add_u32 s{S_XO+3}, s{S_XO+1}, 16384""")
    S_ROLE, S_M0 = T+11, T+12
    k(f"""s_lshr_b32 s{S_ROLE}, s{S_WAVE}, 2
    s_xor_b32 s{S_ROLE}, s{S_ROLE}, s{S_H}
    s_lshr_b32 s{T+6}, s{S_CH}, 1
    s_mul_i32 s{T+6}, s{T+6}, {PAIRB}
    s_and_b32 s{T+9}, s{S_CH}, 1
    s_lshl_b32 s{T+9}, s{T+9}, 9
    s_add_u32 s{T+6}, s{T+6}, s{T+9}
    s_lshl_b32 s{T+9}, s{S_H}, 8
    s_add_u32 s{S_M0}, s{T+6}, s{T+9}
    v_lshlrev_b32 v108, 4, v{KG}
    v_add_u32 v108, s{T+6}, v108
    v_mul_u32_u24 v109, {ROWB}, v{B_}
    v_add_u32 v{V_KY}, v108, v109
    v_add_u32 v109, 48, v{B_}
    v_cmp_eq_u32 vcc, 9, v{B_}
    v_cndmask_b32 v109, v109, 40, vcc
    v_cmp_lt_u32 vcc, 9, v{B_}
    v_cndmask_b32 v109, v109, 48, vcc
    v_mul_u32_u24 v109, {ROWB}, v109
    v_add_u32 v{V_KX2}, v108, v109""")
    la, lb = k.lab("ra"), k.lab("rb")
    k(f"""s_cmp_eq_u32 s{S_ROLE}, 0
    s_cbranch_scc0 {la}
    v_lshrrev_b32 v108, 1, v{KG}
    v_lshlrev_b32 v108, 8, v108
    v_lshl_add_u32 v108, v{B_}, 4, v108
    v_and_b32 v109, 1, v{KG}
    v_lshl_add_u32 v108, v109, 3, v108
    s_add_u32 s{T+6}, s{T+4}, 568
    v_sub_u32 v{V_KW0}, s{T+6}, v108
    v_lshlrev_b32 v108, 5, v{B_}
    v_add_u32 v108, {V8O + 16}, v108
    v_mov_b32 v109, {V2O + 272}
    v_cmp_eq_u32 vcc, 9, v{B_}
    v_cndmask_b32 v108, v108, v109, vcc
    v_mov_b32 v109, {V4O + 272}
    v_cmp_lt_u32 vcc, 9, v{B_}
    v_cndmask_b32 v108, v108, v109, vcc
    v_lshl_add_u32 v108, v{KG}, 3, v108
    v_add_u32 v{V_KW1}, s{T+4}, v108
    s_branch {lb}
    {la}:
    v_and_b32 v108, 1, v{KG}
    v_lshlrev_b32 v108, 7, v108
    v_add_u32 v108, s{T+4}, v108
    v_lshlrev_b32 v109, 3, v{B_}
    v_add_u32 v109, {V2O + 16}, v109
    v_lshlrev_b32 v110, 2, v{B_}
    v_add_u32 v110, {V4O + 16}, v110
    v_cmp_lt_u32 vcc, 1, v{KG}
    v_cndmask_b32 v109, v109, v110, vcc
    v_add_u32 v{V_KW0}, v108, v109
    v_cndmask_b32 v110, 4, 64, vcc
    v_add_u32 v{V_KW1}, v{V_KW0}, v110
    {lb}:""")
    LW, LR, LS = 108, 109, 110
    k(f"""s_mul_i32 s{T+6}, s{S_WAVE}, {ROWB}
    s_add_u32 s{T+6}, s{T+6}, {LNB}
    v_lshl_add_u32 v{LW}, v{V_LANE}, 4, s{T+6}
    v_and_b32 v111, 7, v0
    v_mul_u32_u24 v{LR}, {ROWB}, v111
    v_and_b32 v112, -8, v0
    v_add_u32 v112, {LNB}, v112
    v_add_u32 v113, {LNB + 1024}, v{LR}
    v_add_u32 v{LR}, v112, v{LR}
    v_lshrrev_b32 v112, 3, v0
    v_lshlrev_b32 v112, 15, v112
    v_lshl_add_u32 v{LS}, v111, 4, v112
    s_lshl_b32 s{T+9}, s{S_W}, 7
    s_add_u32 s{T+9}, s{T+9}, {XT}
    s_add_u32 s{T+10}, s{T+9}, {64*32768}
    s_waitcnt lgkmcnt(0)
    s_lshr_b32 s{S_TA}, s{S_EP}, 16
    s_add_u32 s{S_TA}, s{S_TA}, 0x4e37
    s_and_b32 s{S_TA}, s{S_TA}, 0xffff
    s_xor_b32 s{S_TB}, s{S_TA}, 0x5a5a
    s_lshl_b32 s{S_T32}, s{S_TB}, 16
    s_or_b32 s{S_T32}, s{S_T32}, s{S_TA}
    s_lshl_b32 s{S_D}, s{S_DSK}, 16
    s_and_b32 s{S_D+1}, s{S_DSK}, 0xffff0000
    s_lshl_b32 s{S_D+2}, s{S_DSK+1}, 16
    s_and_b32 s{S_D+3}, s{S_DSK+1}, 0xffff0000
    s_lshl_b32 s{T+13}, s{S_CH}, 4
    s_lshr_b64 {sr(S_LDT,2)}, {sr(S_LDT,2)}, s{T+13}
    s_lshl_b32 s{S_LDT}, s{S_LDT}, 16""")
    LSTAT = 113
    XF = 128
    DD = 136
    stamp("consts done")
    k(f"s_waitcnt vmcnt(5)")
    stamp("x arrived")
    k(f"ds_write_b128 v{LW}, {vr(VX,4)}")
    for i in range(4):
        k(f"v_lshlrev_b32 v{XF+2*i}, 16, v{VX+i}\nv_and_b32 v{XF+2*i+1}, 0xffff0000, v{VX+i}")
    k(f"v_readfirstlane_b32 s{T+14}, v{XF}")
    for i in range(4):
        k(f"v_pk_add_f32 {vr(DD+2*i,2)}, {vr(XF+2*i,2)}, {sr(T+14,2)} op_sel_hi:[1,0] neg_lo:[0,1] neg_hi:[0,1]")
    k(f"""v_pk_add_f32 v[144:145], {vr(DD,2)}, {vr(DD+2,2)}
    v_pk_mul_f32 v[146:147], {vr(DD,2)}, {vr(DD,2)}
    v_pk_add_f32 v[148:149], {vr(DD+4,2)}, {vr(DD+6,2)}
    v_pk_fma_f32 v[146:147], {vr(DD+2,2)}, {vr(DD+2,2)}, v[146:147]
    v_pk_add_f32 v[144:145], v[144:145], v[148:149]
    v_pk_fma_f32 v[146:147], {vr(DD+4,2)}, {vr(DD+4,2)}, v[146:147]
    v_add_f32 v144, v144, v145
    v_pk_fma_f32 v[146:147], {vr(DD+6,2)}, {vr(DD+6,2)}, v[146:147]
    s_nop 0
    v_add_f32 v145, v146, v147""")
    RED = ["quad_perm:[1,0,3,2] row_mask:0xf bank_mask:0xf", "quad_perm:[2,3,0,1] row_mask:0xf bank_mask:0xf",
           "row_half_mirror row_mask:0xf bank_mask:0xf", "row_mirror row_mask:0xf bank_mask:0xf",
           "row_bcast:15 row_mask:0xa bank_mask:0xf", "row_bcast:31 row_mask:0xc bank_mask:0xf"]
    for m in RED:
        k(f"v_add_f32_dpp v144, v144, v144 {m}\nv_add_f32_dpp v145, v145, v145 {m}")
    k(f"""v_readlane_b32 s{T+6}, v144, 63
    v_readlane_b32 s{T+13}, v145, 63
    v_mov_b32 v146, {hex(f2u(1.0/512))}
    v_mul_f32 v144, s{T+6}, v146
    v_mul_f32 v145, s{T+13}, v146
    v_add_f32 v147, s{T+14}, v144
    v_fma_f32 v145, -v144, v144, v145
    v_max_f32 v145, 0, v145
    v_cvt_pk_bf16_f32 v145, v145, v145
    v_and_b32 v145, 0xffff0000, v145
    v_add_f32 v145, {hex(f2u(1e-5))}, v145
    v_cvt_pk_bf16_f32 v145, v145, v145
    v_and_b32 v145, 0xffff0000, v145
    v_sqrt_f32 v145, v145
    v_add_u32 v149, 1024, v{LW}
    v_cvt_pk_bf16_f32 v148, v147, v145
    s_mov_b64 exec, 1
    ds_write_b32 v149, v148
    s_mov_b64 exec, -1
    s_waitcnt lgkmcnt(0)
    s_barrier""")
    ST = 148
    G0, G1, GS = 152, 156, 160
    k(f"""ds_read_b64 {vr(G0,2)}, v{LR}
    ds_read_b64 {vr(G1,2)}, v{LR} offset:512
    ds_read_b32 v{GS}, v{LSTAT}
    v_lshlrev_b32 v150, 16, v{ST}
    v_and_b32 v151, 0xffff0000, v{ST}
    v_rcp_f32 v151, v151""")
    for i in range(4):
        k(f"v_pk_add_f32 {vr(DD+2*i,2)}, {vr(XF+2*i,2)}, v[150:151] op_sel_hi:[1,0] neg_lo:[0,1] neg_hi:[0,1]")
    k("s_waitcnt lgkmcnt(0)")
    for g in (G0, G1):
        k(f"""v_alignbit_b32 v{g+2}, v{GS}, v{g+1}, 16
        v_alignbit_b32 v{g+3}, s{S_TB}, v{GS}, 16
        v_mov_b32_sdwa v{g+1}, s{S_TA} dst_sel:WORD_1 dst_unused:UNUSED_PRESERVE src0_sel:WORD_0""")
    k(f"""buffer_store_dwordx4 {vr(G0,4)}, v{LS}, {sr(R_WS,4)}, s{T+9} offen sc1
    buffer_store_dwordx4 {vr(G1,4)}, v{LS}, {sr(R_WS,4)}, s{T+10} offen sc1""")
    def wd_loads():
        for f in range(8):
            k(f"global_load_short_d16_hi v{V_WD+f}, v{V_WDO}, {sr(P_WD,2)} offset:{f*1024-4096}")
    def gu_loads():
        k(f"""global_load_dwordx4 {vr(V_GA,4)}, v{V_FO}, {sr(P_WG,2)}
        global_load_dwordx4 {vr(V_UP,4)}, v{V_FO}, {sr(P_WU,2)}""")
    FFL = opt.get("ffl", "km2")
    stamp("published")
    for i in range(4):
        k(f"v_cvt_pk_bf16_f32 v{164+i}, v{DD+2*i}, v{DD+2*i+1}")
    for i in range(4):
        k(f"v_lshlrev_b32 v{DD+2*i}, 16, v{164+i}\nv_and_b32 v{DD+2*i+1}, 0xffff0000, v{164+i}")
    for i in range(4):
        k(f"v_pk_mul_f32 {vr(DD+2*i,2)}, {vr(DD+2*i,2)}, v[150:151] op_sel:[0,1] op_sel_hi:[1,1]")
    for i in range(4):
        k(f"v_cvt_pk_bf16_f32 v{164+i}, v{DD+2*i}, v{DD+2*i+1}")
    k("s_waitcnt vmcnt(2)")
    k(f"v_dot2_f32_bf16 v144, v164, v{VWR}, 0")
    for i in range(1, 4):
        k(f"v_dot2_f32_bf16 v144, v{164+i}, v{VWR+i}, v144")
    for m in RED:
        k(f"v_add_f32_dpp v144, v144, v144 {m}")
    k(f"""v_cvt_pk_bf16_f32 v144, v144, v144
    v_readlane_b32 s{T+6}, v144, 63
    s_lshl_b32 s{T+13}, s{S_W}, 3
    s_add_u32 s{T+13}, s{T+13}, s{S_WAVE}
    s_sub_u32 s{T+13}, 2047, s{T+13}
    s_ashr_i32 s{T+14}, s{T+6}, 31
    s_or_b32 s{T+14}, s{T+14}, 0x80000000
    s_xor_b32 s{T+6}, s{T+6}, s{T+14}
    s_and_b32 s{T+6}, s{T+6}, 0xffff0000
    s_or_b32 s{T+6}, s{T+6}, s{T+13}
    v_mov_b32 v149, s{T+6}
    v_mov_b32 v146, {MISC}
    s_mov_b64 exec, 1
    ds_max_u64 v146, v[148:149]
    s_mov_b64 exec, -1
    s_waitcnt lgkmcnt(0)
    s_barrier""")
    lc = k.lab("nc")
    k(f"""s_cmp_eq_u32 s{S_WAVE}, 0
    s_cbranch_scc0 {lc}
    ds_read_b64 v[152:153], v146
    s_lshl_b32 s{T+6}, s{S_W}, 4
    s_add_u32 s{T+6}, s{T+6}, {CAND}
    v_mov_b32 v147, 0
    s_waitcnt lgkmcnt(0)
    v_alignbit_b32 v154, s{S_TB}, v152, 16
    v_mov_b32 v155, v153
    v_mov_b32_sdwa v152, s{S_TA} dst_sel:WORD_1 dst_unused:UNUSED_PRESERVE src0_sel:WORD_0
    s_mov_b64 exec, 1
    buffer_store_dwordx4 v[152:155], v147, {sr(R_WS,4)}, s{T+6} offen sc1
    s_mov_b64 exec, -1
    {lc}:""")
    stamp("cand done")
    if rt == "enc":
        le7 = k.lab("e7")
        k(f"""s_load_dwordx2 s[92:93], s[0:1], 104
        s_mov_b32 s94, 256
        s_mov_b32 s95, 0x00020000
        s_waitcnt lgkmcnt(0)
        s_cmp_eq_u32 s{S_WAVE}, 7
        s_cbranch_scc0 {le7}
        s_not_b32 s96, s{S_STAMP}
        v_mov_b32 v147, 0
        v_mov_b32 v146, s96
        s_mov_b64 exec, 1
        buffer_atomic_umax v146, v147, s[92:95], 0 offen sc1
        s_mov_b64 exec, -1
        {le7}:""")
    if stop == "A":
        finish_debug(); k("END:\ns_endpgm"); return k

    LHI = float.fromhex("0x1.7154p+0")
    LLO = (math.log2(math.e) - LHI) * math.log(2.0)
    def exp_acc(dst, src, t):
        k(f"""v_mul_f32 v{dst}, {hex(f2u(LHI))}, {src}
        v_mul_f32 v{t}, {hex(f2u(LLO))}, {src}
        v_exp_f32 v{dst}, v{dst}
        v_fma_f32 v{dst}, v{dst}, v{t}, v{dst}
        v_cvt_pk_bf16_f32 v{dst}, v{dst}, v{dst}
        v_and_b32 v{dst}, 0xffff0000, v{dst}""")
    k(f"s_mov_b32 m0, s{S_M0}\nv_mov_b32 v130, s{S_LDT}")
    exp_acc(128, "v130", 129)
    exp_acc(130, f"v{VP}", 131)
    E1, Y1, E128, B0 = 140, 142, 144, 146
    k(f"""v_mul_f32 v130, v130, v128
    v_mul_f32 v131, v{VP+1}, v128
    v_mul_f32 v130, {hex(f2u(-math.log2(math.e)))}, v130
    v_mul_f32 v131, 0.15915494, v131
    v_add_f32 v128, v128, v128
    v_mul_f32 v{B0}, v{VP+2}, v128
    v_mul_f32 v{B0+1}, v{VP+3}, v128
    v_mul_f32 v132, 0x41000000, v130
    v_mul_f32 v133, 0x41000000, v131
    v_mul_f32 v134, 0x43000000, v130
    v_mul_f32 v135, 0x43000000, v131
    v_fract_f32 v131, v131
    v_fract_f32 v133, v133
    v_fract_f32 v135, v135
    v_exp_f32 v130, v130
    v_exp_f32 v132, v132
    v_exp_f32 v134, v134
    v_cos_f32 v{E1}, v131
    v_sin_f32 v{E1+1}, v131
    v_cos_f32 v{Y1}, v133
    v_sin_f32 v{Y1+1}, v133
    v_cos_f32 v{E128}, v135
    v_sin_f32 v{E128+1}, v135
    v_mov_b32 v136, 0x3f80
    ds_write_addtid_b32 v136 offset:0
    v_pk_mul_f32 {vr(E1,2)}, {vr(E1,2)}, v[130:131] op_sel_hi:[1,0]
    v_pk_mul_f32 {vr(Y1,2)}, {vr(Y1,2)}, v[132:133] op_sel_hi:[1,0] neg_hi:[1,0]
    v_pk_mul_f32 {vr(E128,2)}, {vr(E128,2)}, v[134:135] op_sel_hi:[1,0]""")
    if FFL == "kg": wd_loads(); gu_loads()
    if FFL == "km2": wd_loads()
    NF = {"kg": 0, "km": 10, "km2": 2}[FFL]
    reg = {"E1": E1, "Y1": Y1, "E128": E128, "B0": B0}
    nxt = [148]
    def alloc(name):
        reg[name] = nxt[0]; nxt[0] += 2; assert nxt[0] <= 240
    ops = []
    for i in range(2, 16): ops.append((f"Y{i}", f"Y{i-1}", "Y1", i, 100 - i))
    for q in range(1, 17):
        row = {1: 24, 2: 32, 3: 36, 4: 40, 5: 42, 6: 44, 7: 46}.get(q, 40 + q)
        ops.append((f"B{q}", f"B{q-1}", "E128", row, 200 - q))
    for (n, a, b) in ((2,1,1),(3,2,1),(4,2,2),(5,4,1),(6,4,2),(7,4,3)): ops.append((f"E{n}", f"E{a}", f"E{b}", None, 90 - n))
    for j in range(1, 8): ops.append((f"X0{j}", "B0", f"E{j}", 16 + j, 50))
    for j in range(1, 8): ops.append((f"X1{j}", "B1", f"E{j}", 24 + j, 49))
    for q in (2, 3):
        for jj, j in enumerate((2, 4, 6)): ops.append((f"X{q}{j}", f"B{q}", f"E{j}", 32 + 4*(q-2) + 1 + jj, 48))
    for q in range(4, 8): ops.append((f"X{q}4", f"B{q}", "E4", 40 + 2*(q-4) + 1, 47))
    done = set(reg.keys())
    pend = [("Y1", 1), ("B0", 16)]
    free_pairs = []
    keep = lambda n: n.startswith("E") or n in ("Y1",) or (n[0] == "B" and int(n[1:]) <= 7)
    cv = [240]
    def flush(pl):
        for (n, row) in pl:
            c = cv[0]; cv[0] = 240 + (cv[0] - 240 + 1) % 8
            k(f"v_cvt_pk_bf16_f32 v{c}, v{reg[n]}, v{reg[n]+1}\nds_write_addtid_b32 v{c} offset:{row*ROWB}")
    rem = list(ops)
    TMP = [248, 250, 252, 254]
    retire = []
    while rem:
        ready = sorted([o for o in rem if o[1] in done and o[2] in done], key=lambda o: -o[4])[:4]
        for i, o in enumerate(ready):
            k(f"v_pk_mul_f32 {vr(TMP[i],2)}, {vr(reg[o[1]],2)}, {vr(reg[o[2]],2)} op_sel:[1,1] op_sel_hi:[1,0] neg_lo:[1,0]")
        flush(pend);
        for n in retire: free_pairs.append(reg[n])
        retire = [n for (n, _) in pend if n.startswith("X")]
        pend = []
        for i, o in enumerate(ready):
            if free_pairs: reg[o[0]] = free_pairs.pop()
            else: alloc(o[0])
            k(f"v_pk_fma_f32 {vr(reg[o[0]],2)}, {vr(reg[o[1]],2)}, {vr(reg[o[2]],2)}, {vr(TMP[i],2)} op_sel_hi:[0,1,1]")
            if o[3] is not None: pend.append((o[0], o[3]))
            rem.remove(o)
        for o in ready:
            done.add(o[0])
            if o[0][0] in "YB" and not keep(o[1]): retire.append(o[1])
    flush(pend)
    stamp("kgen done")
    lp = k.lab("np")
    k(f"""s_cmp_lt_u32 s{S_WAVE}, 4
    s_cbranch_scc0 {lp}
    s_mov_b32 s{T+6}, {CAND}
    buffer_load_dwordx4 {vr(V_CD,4)}, v{V_T16}, {sr(R_WS,4)}, s{T+6} offen sc1
    {lp}:""")
    def xt_loads():
        for i in range(4):
            k(f"buffer_load_dwordx4 {vr(V_XT+4*i,4)}, v{V_T16}, {sr(R_WS,4)}, s{S_XO+i} offen sc1")
    xt_loads()
    k("s_waitcnt lgkmcnt(0)\ns_barrier")
    if FFL == "km": wd_loads(); gu_loads()
    if FFL == "km2": gu_loads()
    KYB, KXA, KXB, KA0, KA1 = 128, 160, 192, 224, 228
    lb_, lj = k.lab("kb"), k.lab("kj")
    k(f"s_cmp_eq_u32 s{S_ROLE}, 0\ns_cbranch_scc0 {lb_}")
    for s in range(8):
        k(f"ds_read_b128 {vr(KYB+4*s,4)}, v{V_KY} offset:{64*s}")
        k(f"ds_read_b128 {vr(KXA+4*s,4)}, v{V_KY} offset:{16*ROWB + 64*s}")
        k(f"ds_read_b128 {vr(KXB+4*s,4)}, v{V_KX2} offset:{64*s}")
        if s >= 4:
            u = s - 4
            k(f"s_waitcnt lgkmcnt(12)")
            k(f"v_mfma_f32_16x16x32_bf16 {vr(KA0,4)}, {vr(KXA+4*u,4)}, {vr(KYB+4*u,4)}, {vr(KA0,4) if u else 0}")
            k(f"v_mfma_f32_16x16x32_bf16 {vr(KA1,4)}, {vr(KYB+4*u,4)}, {vr(KXB+4*u,4)}, {vr(KA1,4) if u else 0}")
    for u in range(4, 8):
        k(f"s_waitcnt lgkmcnt({3*(7-u)})")
        k(f"v_mfma_f32_16x16x32_bf16 {vr(KA0,4)}, {vr(KXA+4*u,4)}, {vr(KYB+4*u,4)}, {vr(KA0,4)}")
        k(f"v_mfma_f32_16x16x32_bf16 {vr(KA1,4)}, {vr(KYB+4*u,4)}, {vr(KXB+4*u,4)}, {vr(KA1,4)}")
    k(f"""v_cvt_pk_bf16_f32 v232, v{KA0+3}, v{KA0+2}
    v_cvt_pk_bf16_f32 v233, v{KA0+1}, v{KA0}
    v_cvt_pk_bf16_f32 v234, v{KA1}, v{KA1+1}
    v_cvt_pk_bf16_f32 v235, v{KA1+2}, v{KA1+3}""")
    for (va, d) in ((V_KW0, 232), (V_KW1, 234)):
        for u in range(4):
            if u % 2 == 0: k(f"ds_write_b64 v{va}, {vr(d,2)} offset:{u*KCP}")
            else: k(f"ds_write_b32 v{va}, v{d} offset:{u*KCP}\nds_write_b32 v{va}, v{d+1} offset:{u*KCP+4}")
    k(f"s_branch {lj}\n{lb_}:")
    for s in range(8):
        k(f"ds_read_b128 {vr(KYB+4*s,4)}, v{V_KY} offset:{64*s}")
        k(f"ds_read_b128 {vr(KXA+4*s,4)}, v{V_KY} offset:{32*ROWB + 64*s}")
        if s == 6: k("s_waitcnt lgkmcnt(12)\n" + f"v_mfma_f32_16x16x32_bf16 {vr(KA0,4)}, {vr(KXA,4)}, {vr(KYB,4)}, 0")
    for u in range(1, 8):
        k(f"s_waitcnt lgkmcnt({2*(7-u)})")
        k(f"v_mfma_f32_16x16x32_bf16 {vr(KA0,4)}, {vr(KXA+4*u,4)}, {vr(KYB+4*u,4)}, {vr(KA0,4)}")
    k(f"v_cvt_pk_bf16_f32 v232, v{KA0}, v{KA0+1}\nv_cvt_pk_bf16_f32 v233, v{KA0+2}, v{KA0+3}")
    for u in range(4):
        k(f"ds_write_b32 v{V_KW0}, v232 offset:{u*KCP}\nds_write_b32 v{V_KW1}, v233 offset:{u*KCP}")
    k(f"{lj}:")
    stamp("kmfma done")
    l1, l2, l3 = k.lab("cs"), k.lab("cr"), k.lab("co")
    k(f"""s_cmp_lt_u32 s{S_WAVE}, 4
    s_cbranch_scc0 {l1}
    s_mov_b32 s{T+7}, {spin}
    s_waitcnt vmcnt({4+NF})
    {l2}:
    v_cmp_eq_u32_sdwa vcc, v{V_CD}, s{S_TA} src0_sel:WORD_1 src1_sel:DWORD
    v_cmp_eq_u32_sdwa {sr(T+8,2)}, v{V_CD+2}, s{S_TB} src0_sel:WORD_1 src1_sel:DWORD
    s_and_b64 vcc, vcc, {sr(T+8,2)}
    s_cmp_eq_u64 vcc, -1
    s_cbranch_scc1 {l3}
    s_sub_u32 s{T+7}, s{T+7}, 1
    s_cbranch_scc1 {l3}
    buffer_load_dwordx4 {vr(V_CD,4)}, v{V_T16}, {sr(R_WS,4)}, s{T+6} offen sc1
    s_waitcnt vmcnt(0)
    s_branch {l2}
    {l3}:
    s_mov_b32 s{T+8}, 0x05040100
    v_mov_b32 v122, v{V_CD+1}
    v_perm_b32 v{V_CD}, v{V_CD+2}, v{V_CD}, s{T+8}""")
    for m in RED:
        k(f"v_max_u32_dpp v122, v122, v122 {m}")
    k(f"""v_readlane_b32 s{T+8}, v122, 63
    v_mov_b32 v123, {MISC + 16}
    v_cmp_eq_u32 vcc, s{T+8}, v{V_CD+1}
    s_mov_b64 exec, vcc
    ds_max_u64 v123, {vr(V_CD,2)}
    s_mov_b64 exec, -1
    {l1}:
    v_mov_b32 v123, {MISC + 16}
    s_waitcnt lgkmcnt(0)
    s_barrier
    ds_read_b64 v[120:121], v123""")
    le = k.lab("ne")
    k(f"""s_or_b32 s{T+6}, s{S_W}, s{S_WAVE}
    s_cmp_eq_u32 s{T+6}, 0
    s_cbranch_scc0 {le}
    s_lshl_b32 s{T+6}, s{S_TA}, 16
    v_mov_b32 v122, s{T+6}
    v_mov_b32 v123, 0
    s_mov_b64 exec, 1
    buffer_store_dword v122, v123, {sr(R_WS,4)}, 0 offen sc1
    s_mov_b64 exec, -1
    {le}:""")
    if stop == "B":
        k(f"s_waitcnt lgkmcnt(0)")
        finish_debug(); k("END:\ns_endpgm"); return k
    def F(a, e): return V_F + (a*4 + e)*4
    q = []
    def lds(txt, name):
        k(txt); q.append(name)
        assert len(q) <= 15, "too many lds ops"
    def wait(name):
        if name in q:
            i = q.index(name); n = len(q) - 1 - i
            k(f"s_waitcnt lgkmcnt({n})")
            del q[:i+1]
    q.append("idx")
    Z1T, Z2T = 96, 100
    FN1, FN1B, FN2, FN4 = 116, 94, 88, 92
    for e in range(4):
        lds(f"ds_read_b128 {vr(F(0,e),4)}, v{V_Z1} offset:{512-64*e}", f"z1a{e}")
        lds(f"ds_read_b32 v{Z1T+e}, v{V_Z1} offset:{512-64*e+16}", f"z1b{e}")
    for e in range(4):
        lds(f"ds_read_b128 {vr(Z2T+4*e,4)}, v{V_Z2} offset:{32*e}", f"z2{e}")
    wait("idx")
    k(f"""v_readfirstlane_b32 s{S_ST}, v120
    v_readfirstlane_b32 s{S_KEY}, v121
    s_and_b32 s{S_IDX}, s{S_KEY}, 0x7ff
    s_sub_u32 s{S_IDX}, 2047, s{S_IDX}
    s_lshr_b32 s{S_J}, s{S_IDX}, 8
    s_lshl_b32 s{T+6}, s{S_IDX}, 10
    v_lshl_add_u32 v123, v0, 1, s{T+6}
    global_load_short_d16_hi v{V_XS}, v123, {sr(P_X,2)}
    s_add_u32 s{S_IDX}, s{T+6}, s{S_C02}""")
    def align4(dst, src, fifth):
        for p in range(4):
            hi = f"v{src+p+1}" if p < 3 else f"v{fifth}"
            k(f"v_alignbyte_b32 v{dst+p}, {hi}, v{src+p}, v{V_PAR}")
    def perm2(dst, d):
        k(f"""v_perm_b32 v{dst+3}, v{d+1}, v{d}, v{V_S2}
        v_perm_b32 v{dst+2}, v{d+1}, v{d}, v{V_S2+1}
        v_perm_b32 v{dst+1}, v{d+2}, v{d+1}, v{V_S2}
        v_perm_b32 v{dst}, v{d+2}, v{d+1}, v{V_S2+1}""")
    def perm4(dst, d, sel):
        for p in range(4): k(f"v_perm_b32 v{dst+p}, v{d+1}, v{d}, v{sel+p}")
    z4land = lambda a, e: F(7,0) + ((a-2)*4 + e)*2
    z8land = {(4,0): F(6,0), (4,2): F(6,1), (5,0): F(6,2), (5,2): F(6,3), (6,0): Z2T, (6,2): Z2T+4, (7,0): Z2T+8, (7,2): Z2T+12}
    z4l = [(a, e) for a in (2,3) for e in range(4)]
    def z4load(a, e): lds(f"ds_read_b64 {vr(z4land(a,e),2)}, v{V_Z4} offset:{128*(a-2)+16*e}", f"z4{a}{e}")
    def z8load(a, e): lds(f"ds_read_b128 {vr(z8land[(a,e)],4)}, v{V_Z8} offset:{64*(a-4)+8*e}", f"z8{a}{e}")
    for e in range(4):
        wait(f"z1b{e}")
        z4load(*z4l[2*e]); z4load(*z4l[2*e+1])
        align4(F(0,e), F(0,e), Z1T+e)
    for e in range(4):
        wait(f"z2{e}")
        z8load(4 + e//2, 2*(e%2))
        perm2(F(1,e), Z2T+4*e)
    fine = [(f"ds_read_b128 {vr(FN1,4)}, v{V_Z1} offset:0", "f1a"), (f"ds_read_b32 v{FN1B}, v{V_Z1} offset:16", "f1b"),
            (f"ds_read_b128 {vr(FN2,4)}, v{V_Z2} offset:256", "f2"), (f"ds_read_b64 {vr(FN4,2)}, v{V_Z4} offset:256", "f4")]
    for i, (a, e) in enumerate(z4l):
        wait(f"z4{a}{e}")
        if i < 4: z8load(6 + i//2, 2*(i%2))
        else: lds(*fine[i-4])
        perm4(F(a,e), z4land(a,e), V_S4)
    for a in range(4, 8):
        for e in (0, 2):
            wait(f"z8{a}{e}")
            perm4(F(a,e), z8land[(a,e)], V_S8)
            perm4(F(a,e+1), z8land[(a,e)]+2, V_S8)
    wait("f4")
    lf = k.lab("nf")
    k(f"s_cmp_eq_u32 s{S_H}, 0\ns_cbranch_scc0 {lf}")
    align4(FN1, FN1, FN1B)
    perm2(96, FN2)
    perm4(100, FN4, V_S4)
    for p in range(4):
        k(f"""v_bfi_b32 v{F(0,0)+p}, v{V_M+p}, 0, v{F(0,0)+p}
        v_bfi_b32 v{F(1,0)+p}, v{V_M+p}, v{FN1+p}, v{F(1,0)+p}
        v_bfi_b32 v{F(2,0)+p}, v{V_M+p}, v{96+p}, v{F(2,0)+p}
        v_bfi_b32 v{F(4,0)+p}, v{V_M+p}, v{100+p}, v{F(4,0)+p}""")
    k(f"{lf}:")
    stamp("F built")
    l1, l2 = k.lab("xr"), k.lab("xo")
    k(f"s_mov_b32 s{T+7}, {spin}\ns_waitcnt vmcnt({1+NF})\n{l1}:")
    for i in range(4):
        d = V_XT + 4*i
        k(f"v_cmp_eq_u32_sdwa {sr(T+2*(i%2),2) if i else 'vcc'}, v{d+1}, s{S_TA} src0_sel:WORD_1 src1_sel:DWORD")
        k(f"v_cmp_eq_u32_sdwa {sr(T+4,2)}, v{d+3}, s{S_TB} src0_sel:WORD_1 src1_sel:DWORD")
        if i: k(f"s_and_b64 vcc, vcc, {sr(T+2*(i%2),2)}")
        k(f"s_and_b64 vcc, vcc, {sr(T+4,2)}")
    k(f"""s_cmp_eq_u64 vcc, -1
    s_cbranch_scc1 {l2}
    s_sub_u32 s{T+7}, s{T+7}, 1
    s_cbranch_scc1 {l2}""")
    xt_loads()
    k(f"s_waitcnt vmcnt(0)\ns_branch {l1}\n{l2}:")
    stamp("xt ok")
    NL2E = T + 8
    k(f"s_mov_b32 s{NL2E}, {hex(f2u(-math.log2(math.e)))}")
    def norm4(d, X, N, t, keepn):
        k(f"""v_lshlrev_b32 v{t+1}, 16, v{d+3}
        v_and_b32 v{t}, 0xffff0000, v{d+2}
        v_rcp_f32 v{t+1}, v{t+1}
        v_lshlrev_b32 v{X}, 16, v{d}
        v_and_b32 v{X+1}, 0xffff0000, v{d}
        v_lshlrev_b32 v{X+2}, 16, v{d+1}
        v_lshlrev_b32 v{X+3}, 16, v{d+2}
        v_pk_add_f32 {vr(N,2)}, {vr(X,2)}, {vr(t,2)} op_sel_hi:[1,0] neg_lo:[0,1] neg_hi:[0,1]
        v_pk_add_f32 {vr(N+2,2)}, {vr(X+2,2)}, {vr(t,2)} op_sel_hi:[1,0] neg_lo:[0,1] neg_hi:[0,1]
        v_cvt_pk_bf16_f32 v{t+2}, v{N}, v{N+1}
        v_cvt_pk_bf16_f32 v{t+3}, v{N+2}, v{N+3}
        v_lshlrev_b32 v{N}, 16, v{t+2}
        v_and_b32 v{N+1}, 0xffff0000, v{t+2}
        v_lshlrev_b32 v{N+2}, 16, v{t+3}
        v_and_b32 v{N+3}, 0xffff0000, v{t+3}
        v_pk_mul_f32 {vr(N,2)}, {vr(N,2)}, {vr(t,2)} op_sel:[0,1] op_sel_hi:[1,1]
        v_pk_mul_f32 {vr(N+2,2)}, {vr(N+2,2)}, {vr(t,2)} op_sel:[0,1] op_sel_hi:[1,1]
        v_cvt_pk_bf16_f32 v{t+2}, v{N}, v{N+1}
        v_cvt_pk_bf16_f32 v{t+3}, v{N+2}, v{N+3}""")
        if keepn:
            k(f"""v_lshlrev_b32 v{N}, 16, v{t+2}
            v_and_b32 v{N+1}, 0xffff0000, v{t+2}
            v_lshlrev_b32 v{N+2}, 16, v{t+3}
            v_and_b32 v{N+3}, 0xffff0000, v{t+3}""")
    def silu4(G, B):
        k(f"""v_pk_mul_f32 {vr(G,2)}, {vr(B,2)}, {sr(NL2E,2)} op_sel_hi:[1,0]
        v_pk_mul_f32 {vr(G+2,2)}, {vr(B+2,2)}, {sr(NL2E,2)} op_sel_hi:[1,0]""")
        for c in range(4): k(f"v_exp_f32 v{G+c}, v{G+c}")
        k(f"""v_pk_add_f32 {vr(G,2)}, {vr(G,2)}, 1.0 op_sel_hi:[1,0]
        v_pk_add_f32 {vr(G+2,2)}, {vr(G+2,2)}, 1.0 op_sel_hi:[1,0]""")
        for c in range(4): k(f"v_rcp_f32 v{G+c}, v{G+c}")
        k(f"""v_pk_mul_f32 {vr(G,2)}, {vr(G,2)}, {vr(B,2)}
        v_pk_mul_f32 {vr(G+2,2)}, {vr(G+2,2)}, {vr(B+2,2)}""")
    for i in range(4):
        d = V_XT + 4*i
        X, N, t = 96 + 12*(i%2), 100 + 12*(i%2), 104 + 12*(i%2)
        own = (i % 2 == 0)
        norm4(d, X, N, t, own)
        va = V_UA if own else V_UBB
        o = 2048*(i >> 1)
        k(f"""ds_write_b16 v{va}, v{t+2} offset:{o}
        ds_write_b16_d16_hi v{va}, v{t+2} offset:{o+UCH}
        ds_write_b16 v{va}, v{t+3} offset:{o+2*UCH}
        ds_write_b16_d16_hi v{va}, v{t+3} offset:{o+3*UCH}""")
        if own:
            G = V_OG + 8*(i >> 1); C = G + 4
            silu4(G, N)
            k(f"""v_pk_mul_f32 {vr(N,2)}, {vr(N,2)}, {sr(S_D,2)}
            v_pk_mul_f32 {vr(N+2,2)}, {vr(N+2,2)}, {sr(S_D+2,2)}
            v_pk_fma_f32 {vr(C,2)}, {vr(N,2)}, {vr(G,2)}, {vr(X,2)}
            v_pk_fma_f32 {vr(C+2,2)}, {vr(N+2,2)}, {vr(G+2,2)}, {vr(X+2,2)}""")
    stamp("xt consumed")
    lv1 = k.lab("f1")
    PP = 96
    k(f"""s_cmp_eq_u32 s{S_VAL}, 0
    s_cbranch_scc1 {lv1}
    s_and_b32 s{T}, s{S_ST}, 0xffff0000
    s_lshl_b32 s{T+1}, s{S_ST}, 16
    v_rcp_f32 v112, s{T}
    v_lshrrev_b32 v114, 2, v{V_LANE}
    v_lshlrev_b32 v114, 2, v114
    s_lshl_b32 s{T+2}, s{S_WAVE}, 6
    s_add_u32 s{T+2}, s{T+2}, {TT}
    v_add_u32 v114, s{T+2}, v114
    s_waitcnt vmcnt(0)
    v_subrev_f32 v{V_XS}, s{T+1}, v{V_XS}
    v_cvt_pk_bf16_f32 v{V_XS}, v{V_XS}, v{V_XS}
    v_and_b32 v{V_XS}, 0xffff0000, v{V_XS}
    v_mul_f32 v{V_XS}, v{V_XS}, v112
    v_cvt_pk_bf16_f32 v112, v{V_XS}, 0
    v_lshlrev_b32 v113, 16, v112""")
    for i in range(8):
        k(f"v_dot2_f32_bf16 v{PP+i}, v{V_GA+i//2}, v{112+i%2}, 0")
        k(f"v_dot2_f32_bf16 v{PP+8+i}, v{V_UP+i//2}, v{112+i%2}, 0")
    for i in range(8): k(f"v_permlane32_swap_b32 v{PP+i}, v{PP+8+i}")
    for i in range(8): k(f"v_add_f32 v{PP+i}, v{PP+i}, v{PP+8+i}")
    for i in range(4): k(f"v_permlane16_swap_b32 v{PP+i}, v{PP+4+i}")
    for i in range(4): k(f"v_add_f32 v{PP+i}, v{PP+i}, v{PP+4+i}")
    k(f"""v_add_f32_dpp v{PP}, v{PP}, v{PP} row_ror:8 row_mask:0xf bank_mask:0x3
    v_add_f32_dpp v{PP+1}, v{PP+1}, v{PP+1} row_ror:8 row_mask:0xf bank_mask:0x3
    v_add_f32_dpp v{PP}, v{PP+2}, v{PP+2} row_ror:8 row_mask:0xf bank_mask:0xc
    v_add_f32_dpp v{PP+1}, v{PP+3}, v{PP+3} row_ror:8 row_mask:0xf bank_mask:0xc
    v_add_f32_dpp v{PP+2}, v{PP}, v{PP} row_half_mirror row_mask:0xf bank_mask:0x5
    v_add_f32_dpp v{PP+2}, v{PP+1}, v{PP+1} row_half_mirror row_mask:0xf bank_mask:0xa
    v_add_f32_dpp v{PP+2}, v{PP+2}, v{PP+2} quad_perm:[1,0,3,2] row_mask:0xf bank_mask:0xf
    v_add_f32_dpp v{PP+2}, v{PP+2}, v{PP+2} quad_perm:[2,3,0,1] row_mask:0xf bank_mask:0xf
    ds_write_b32 v114, v{PP+2}
    {lv1}:
    s_waitcnt lgkmcnt(0)
    s_barrier""")
    stamp("B5")
    if stop == "C":
        finish_debug(); k("END:\ns_endpgm"); return k
    def ffn2():
        lv2 = k.lab("f2")
        k(f"""s_cmp_eq_u32 s{S_VAL}, 0
        s_cbranch_scc1 {lv2}
        v_lshlrev_b32 v4, 2, v{V_LANE}
        v_add_u32 v4, {TT}, v4
        ds_read2_b32 v[2:3], v4 offset0:0 offset1:64
        v_lshrrev_b32 v6, 2, v0
        v_mul_u32_u24 v6, 5504, v6
        v_and_b32 v7, 3, v0
        v_lshl_add_u32 v6, v7, 3, v6
        s_lshl_b32 s{T}, s{S_SL}, 5
        s_add_u32 s{T}, s{T}, {PART}
        v_mov_b32 v9, s{S_T32}
        s_waitcnt lgkmcnt(0)
        v_add_f32 v2, v2, v3
        v_mov_b32 v3, v2
        v_permlane32_swap_b32 v2, v3
        v_add_f32 v2, v2, v3
        v_mov_b32 v3, v2
        v_permlane16_swap_b32 v2, v3
        v_add_f32 v2, v2, v3
        v_cvt_pk_bf16_f32 v2, v2, v2
        v_and_b32 v2, 0xffff0000, v2
        v_mul_f32 v3, s{NL2E}, v2
        v_exp_f32 v3, v3
        v_add_f32 v3, 1.0, v3
        v_rcp_f32 v3, v3
        v_mul_f32 v3, v3, v2
        v_cvt_pk_bf16_f32 v3, v3, v3
        v_and_b32 v3, 0xffff0000, v3
        v_mul_f32_dpp v3, v2, v3 row_ror:8 row_mask:0xf bank_mask:0xf
        v_cvt_pk_bf16_f32 v3, v3, v3
        v_and_b32 v3, 0xffff0000, v3""")
        hs = [T+1, T+2, T+3, T+4, T+5, T+6, T+7, T+10]
        for f in range(8): k(f"v_readlane_b32 s{hs[f]}, v3, {f}")
        k(f"v_mul_f32 v8, s{hs[0]}, v{V_WD}")
        for f in range(1, 8): k(f"v_fmac_f32 v8, s{hs[f]}, v{V_WD+f}")
        k(f"buffer_store_dwordx2 v[8:9], v6, {sr(R_WS,4)}, s{T} offen sc1\n{lv2}:")
    ffn2()
    stamp("ffn2")
    S_OWNW = T + 13
    k(f"""s_lshr_b32 s{T}, s{S_J}, 1
    s_xor_b32 s{T}, s{T}, s{S_J}
    s_and_b32 s{T}, s{T}, 1
    s_bfe_u32 s{T+1}, s{S_IDX}, 0x30010
    s_lshl_b32 s{T}, s{T}, 3
    s_or_b32 s{T}, s{T}, s{T+1}
    s_lshl_b32 s{T+1}, s{S_HF}, 3
    s_or_b32 s{T+1}, s{T+1}, s{S_WAVE}
    s_cmp_eq_u32 s{T}, s{T+1}
    s_cselect_b32 s{S_OWNW}, 1, 0""")
    PL = 192
    PRD = 2
    def part_loads():
        k(f"""s_mul_i32 s{T}, s{S_CG}, 5504
        s_add_u32 s{T}, s{T}, {PART}
        v_lshlrev_b32 v16, 4, v{V_LANE}""")
        for i in range(4):
            k(f"buffer_load_dwordx4 {vr(PL+4*i,4)}, v16, {sr(R_WS,4)}, s{T} offen offset:{1024*i} sc1")
        k(f"""s_add_u32 s{T}, s{T}, 4096
        buffer_load_dwordx4 {vr(PL+16,4)}, v16, {sr(R_WS,4)}, s{T} offen sc1
        s_mov_b64 exec, 0xffffff
        buffer_load_dwordx4 {vr(PL+20,4)}, v16, {sr(R_WS,4)}, s{T} offen offset:1024 sc1
        s_mov_b64 exec, -1""")
    def conv(tiles):
        jA, jB, jC, jD = tiles
        acc = {"A": V_ACC, "B": V_ACC+4, "C": V_ACC, "D": V_ACC+8}
        steps = []
        for s in range(jA, -1, -1):
            for e in range(4): steps.append((s, e, [("A", jA-s)]))
        endA = len(steps)
        for s in range(jB, -1, -1):
            for e in range(4): steps.append((s, e, [("B", jB-s)]))
        endB = len(steps)
        for s in range(jC, -1, -1):
            for e in range(4): steps.append((s, e, [("C", jC-s), ("D", jD-s)]))
        endC = len(steps)
        for s in range(jD, jC, -1):
            for e in range(4): steps.append((s, e, [("D", jD-s)]))
        endD = len(steps)
        NB = 6; PF = 5
        del q[:]
        def gload(i):
            s, e, _ = steps[i]
            lds(f"ds_read_b128 {vr(V_GB+4*(i%NB),4)}, v{V_G} offset:{512*s+64*(3-e)}", f"g{i}")
        def pw(t, buf): lds(f"ds_write_b128 v{V_PW}, {vr(acc[t],4)} offset:{buf*10240}", f"pw{t}")
        def bar_rd(t, buf):
            wait(f"pw{t}"); k("s_barrier")
            for h in range(2):
                for c in range(2):
                    o = 40*buf + 20*h + 10*c
                    lds(f"ds_read2st64_b32 {vr(PRD+4*h+2*c,2)}, v{V_PR} offset0:{o} offset1:{o+5}", f"pr{t}{h}{c}")
        def epi(t, j):
            own = 0 if t in "AC" else 1
            slot = 0 if t in "AB" else 1
            G = V_OG + 8*slot; C = G + 4
            le_, ls_ = k.lab("ep"), k.lab("es")
            wait(f"pr{t}11")
            k(f"""s_cmp_eq_u32 s{S_OWN}, {own}
            s_cbranch_scc0 {le_}
            v_pk_add_f32 {vr(PRD,2)}, {vr(PRD,2)}, {vr(PRD+4,2)}
            v_pk_add_f32 {vr(PRD+2,2)}, {vr(PRD+2,2)}, {vr(PRD+6,2)}
            s_sub_u32 s{T}, s{S_IDX}, {j*262144}
            s_mov_b32 s{T+1}, {j*262144}
            v_cmp_ne_u32 vcc, s{T}, v{V_OUT}
            v_pk_fma_f32 {vr(PRD+4,2)}, {vr(PRD,2)}, {vr(G,2)}, {vr(C,2)}
            v_pk_fma_f32 {vr(PRD+6,2)}, {vr(PRD+2,2)}, {vr(G+2,2)}, {vr(C+2,2)}
            v_cvt_pk_bf16_f32 v10, v{PRD+4}, v{PRD+5}
            v_cvt_pk_bf16_f32 v11, v{PRD+6}, v{PRD+7}
            s_mov_b64 exec, vcc
            buffer_store_dwordx2 v[10:11], v{V_OUT}, {sr(R_OUT,4)}, s{T+1} offen {opt.get("omod","")}
            s_mov_b64 exec, -1
            s_cmp_eq_u32 s{S_J}, {j}
            s_cbranch_scc0 {le_}""")
            for c in range(4): k(f"v_mov_b32 v{V_SV+c}, v{PRD+c}\nv_mov_b32 v{V_SV+4+c}, v{V_XT+8*slot+c}")
            k(f"{le_}:")
        ev = {}
        def at(i, fn): ev.setdefault(min(i, endD), []).append(fn)
        at(endA+1, lambda: pw("A", 0)); at(endA+3, lambda: bar_rd("A", 0)); at(endA+6, lambda: epi("A", jA))
        at(endB+1, lambda: pw("B", 1)); at(endB+3, lambda: bar_rd("B", 1)); at(endB+6, lambda: epi("B", jB))
        def pl():
            lp_ = k.lab("pl")
            k(f"""s_cmp_eq_u32 s{S_OWNW}, 0
            s_cbranch_scc1 {lp_}
            v_mov_b32 v{PL+20}, 0
            v_mov_b32 v{PL+21}, s{S_T32}
            v_mov_b32 v{PL+22}, 0
            v_mov_b32 v{PL+23}, s{S_T32}""")
            part_loads()
            k(f"{lp_}:")
        at(endC+1, pl)
        at(endC+1, lambda: pw("C", 0)); at(endC+3, lambda: bar_rd("C", 0)); at(endC+6, lambda: epi("C", jC))
        at(endD, lambda: pw("D", 1)); at(endD, lambda: bar_rd("D", 1)); at(endD, lambda: epi("D", jD))
        first = set()
        for i in range(min(PF, endD)): gload(i)
        for i in range(endD):
            for fn in ev.get(i, []): fn()
            wait(f"g{i}")
            g = V_GB + 4*(i % NB)
            for (t, a) in steps[i][2]:
                c = vr(acc[t],4) if t in first else "0"
                first.add(t)
                k(f"v_mfma_f32_16x16x32_bf16 {vr(acc[t],4)}, {vr(F(a,steps[i][1]),4)}, {vr(g,4)}, {c}")
            if i + PF < endD: gload(i + PF)
        for fn in ev.get(endD, []): fn()
    lh1, lfin = k.lab("h1"), k.lab("fin")
    k(f"s_cmp_eq_u32 s{S_HF}, 0\ns_cbranch_scc0 {lh1}")
    conv((0, 3, 4, 7))
    k(f"s_branch {lfin}\n{lh1}:")
    conv((1, 2, 5, 6))
    k(f"{lfin}:")
    stamp("conv done")
    ldone, l1, l2 = k.lab("dn"), k.lab("pr"), k.lab("po")
    k(f"""s_cmp_eq_u32 s{S_OWNW}, 0
    s_cbranch_scc1 {ldone}
    s_mov_b32 s{T+7}, {spin}
    s_waitcnt vmcnt(1)
    {l1}:
    v_cmp_eq_u32 vcc, s{S_T32}, v{PL+1}""")
    for i in range(1, 12):
        k(f"v_cmp_eq_u32 {sr(T+2*(i%2),2)}, s{S_T32}, v{PL+2*i+1}\ns_and_b64 vcc, vcc, {sr(T+2*(i%2),2)}")
    k(f"""s_cmp_eq_u64 vcc, -1
    s_cbranch_scc1 {l2}
    s_sub_u32 s{T+7}, s{T+7}, 1
    s_cbranch_scc1 {l2}""")
    part_loads()
    k(f"s_waitcnt vmcnt(0)\ns_branch {l1}\n{l2}:")
    for i in range(1, 6):
        k(f"v_add_f32 v{PL}, v{PL}, v{PL+4*i}\nv_add_f32 v{PL+2}, v{PL+2}, v{PL+4*i+2}")
    for m in ("quad_perm:[2,3,0,1]", "row_ror:4", "row_ror:8"):
        k(f"v_add_f32_dpp v{PL}, v{PL}, v{PL} {m} row_mask:0xf bank_mask:0xf\nv_add_f32_dpp v{PL+2}, v{PL+2}, v{PL+2} {m} row_mask:0xf bank_mask:0xf")
    for sw in ("v_permlane32_swap_b32", "v_permlane16_swap_b32"):
        k(f"""v_mov_b32 v{PL+1}, v{PL}
        v_mov_b32 v{PL+3}, v{PL+2}
        {sw} v{PL}, v{PL+1}
        {sw} v{PL+2}, v{PL+3}
        v_add_f32 v{PL}, v{PL}, v{PL+1}
        v_add_f32 v{PL+2}, v{PL+2}, v{PL+3}""")
    X, N, t, Y, G = 96, 100, 104, 108, 112
    k(f"""v_cvt_pk_bf16_f32 v{PL}, v{PL}, v{PL+2}
    s_ashr_i32 s{T+2}, s{S_KEY}, 31
    s_not_b32 s{T+2}, s{T+2}
    s_or_b32 s{T+2}, s{T+2}, 0x80000000
    s_xor_b32 s{T+2}, s{T+2}, s{S_KEY}
    s_and_b32 s{T+2}, s{T+2}, 0xffff0000
    v_readlane_b32 s{T}, v{PL}, 0
    v_readlane_b32 s{T+1}, v{PL}, 1
    v_mov_b32 v{G}, s{T+2}
    v_mul_f32 v{G}, s{NL2E}, v{G}
    v_exp_f32 v{G}, v{G}
    v_add_f32 v{G}, 1.0, v{G}
    v_rcp_f32 v{G}, v{G}
    v_cvt_pk_bf16_f32 v{G}, v{G}, v{G}
    v_and_b32 v{G}, 0xffff0000, v{G}
    s_lshl_b32 s{T+2}, s{T}, 16
    s_and_b32 s{T+3}, s{T}, 0xffff0000
    s_lshl_b32 s{T+4}, s{T+1}, 16
    s_and_b32 s{T+5}, s{T+1}, 0xffff0000
    v_pk_mul_f32 {vr(Y,2)}, {vr(G,2)}, {sr(T+2,2)} op_sel_hi:[0,1]
    v_pk_mul_f32 {vr(Y+2,2)}, {vr(G,2)}, {sr(T+4,2)} op_sel_hi:[0,1]
    v_cvt_pk_bf16_f32 v{G}, v{Y}, v{Y+1}
    v_cvt_pk_bf16_f32 v{G+1}, v{Y+2}, v{Y+3}
    v_lshlrev_b32 v{Y}, 16, v{G}
    v_and_b32 v{Y+1}, 0xffff0000, v{G}
    v_lshlrev_b32 v{Y+2}, 16, v{G+1}
    v_and_b32 v{Y+3}, 0xffff0000, v{G+1}""")
    norm4(V_SV+4, X, N, t, True)
    k(f"""v_pk_add_f32 {vr(Y,2)}, {vr(Y,2)}, {vr(N,2)}
    v_pk_add_f32 {vr(Y+2,2)}, {vr(Y+2,2)}, {vr(N+2,2)}
    v_cvt_pk_bf16_f32 v{G}, v{Y}, v{Y+1}
    v_cvt_pk_bf16_f32 v{G+1}, v{Y+2}, v{Y+3}
    v_lshlrev_b32 v{Y}, 16, v{G}
    v_and_b32 v{Y+1}, 0xffff0000, v{G}
    v_lshlrev_b32 v{Y+2}, 16, v{G+1}
    v_and_b32 v{Y+3}, 0xffff0000, v{G+1}""")
    silu4(G, Y)
    k(f"""v_pk_fma_f32 {vr(N,2)}, {vr(N,2)}, {sr(S_D,2)}, {vr(V_SV,2)}
    v_pk_fma_f32 {vr(N+2,2)}, {vr(N+2,2)}, {sr(S_D+2,2)}, {vr(V_SV+2,2)}
    s_lshl_b32 s{T+1}, s{S_J}, 18
    s_sub_u32 s{T}, s{S_IDX}, s{T+1}
    v_cmp_eq_u32 vcc, s{T}, v{V_OUT}
    v_pk_fma_f32 {vr(N,2)}, {vr(N,2)}, {vr(G,2)}, {vr(X,2)}
    v_pk_fma_f32 {vr(N+2,2)}, {vr(N+2,2)}, {vr(G+2,2)}, {vr(X+2,2)}
    v_cvt_pk_bf16_f32 v10, v{N}, v{N+1}
    v_cvt_pk_bf16_f32 v11, v{N+2}, v{N+3}
    s_mov_b64 exec, vcc
    buffer_store_dwordx2 v[10:11], v{V_OUT}, {sr(R_OUT,4)}, s{T+1} offen
    s_mov_b64 exec, -1
    {ldone}:""")
    if rt == "enc":
        k("s_waitcnt vmcnt(0)")
        stamp("end")
        lsp, lsd = k.lab("sp"), k.lab("sd")
        mult, const = opt.get("mult", 10), opt.get("const", 0)
        k(f"""v_mov_b32 v2, 0
        buffer_load_dword v3, v2, s[92:95], 0 offen sc0 sc1
        s_waitcnt vmcnt(0) lgkmcnt(0)
        v_readfirstlane_b32 s96, v3
        s_not_b32 s96, s96
        {"s_load_dword s96, s[32:33], 0x800" if opt.get("pre") else ""}
        s_waitcnt lgkmcnt(0)
        s_sub_u32 s97, s{S_STAMP+2*(nst[0]-1)}, s96
        s_mul_i32 s97, s97, {mult}
        s_cmp_eq_u32 s{S_VAL}, 0
        {"s_cselect_b32 s97, s97, 0" if opt.get("only") == "inval" else "s_cselect_b32 s97, 0, s97" if opt.get("only") == "valid" else ""}
        s_add_u32 s97, s97, {const}
        {"s_getreg_b32 s98, hwreg(HW_REG_XCC_ID, 0, 4)" if opt.get("xcc") else "s_mov_b32 s98, s2"}
        s_sub_u32 s98, s98, s2
        s_and_b32 s98, s98, 7
        s_mul_i32 s98, s98, 200
        s_add_u32 s97, s97, s98
        {"buffer_wbl2 sc1" if opt.get("wbl2") else ""}
        s_waitcnt vmcnt(0)
        s_min_u32 s97, s97, 30000
        s_mov_b32 s98, 100000
        {lsp}:
        s_sleep 2
        s_memrealtime s[100:101]
        s_waitcnt lgkmcnt(0)
        s_sub_u32 s99, s100, s96
        s_cmp_ge_u32 s99, s97
        s_cbranch_scc1 {lsd}
        s_sub_u32 s98, s98, 1
        s_cbranch_scc0 {lsp}
        {lsd}:""")
    elif stamps and rt is True:
        k("s_waitcnt vmcnt(0)")
        stamp("end")
        k(f"""s_load_dwordx2 {sr(T,2)}, s[0:1], 104
        s_mov_b32 s{T+2}, 256
        s_mov_b32 s{T+3}, 0x00020000
        v_lshlrev_b32 v2, 2, v{V_LANE}
        s_waitcnt lgkmcnt(0)""")
        n = nst[0]
        for i in range(n):
            k(f"v_writelane_b32 v3, s{S_STAMP+2*i}, {i}")
        k(f"s_not_b32 s{T+4}, s{S_STAMP}\nv_writelane_b32 v3, s{T+4}, {n}\ns_not_b32 s{T+4}, s{S_STAMP+2*n-2}\nv_writelane_b32 v3, s{T+4}, {n+1}")
        k(f"s_mov_b64 exec, {(1 << (n+2)) - 1}\nbuffer_atomic_umax v3, v2, {sr(T,4)}, 0 offen sc1")
    elif stamps:
        k("s_waitcnt vmcnt(0)")
        stamp("end")
        k(f"""s_waitcnt lgkmcnt(0)
        s_lshl_b32 s{T}, s{S_W}, 3
        s_add_u32 s{T}, s{T}, s{S_WAVE}
        s_lshl_b32 s{T}, s{T}, 7
        s_add_u32 s{T}, s{T}, {DBGT}
        v_lshlrev_b32 v2, 2, v{V_LANE}""")
        for i in range(2*nst[0]):
            k(f"v_writelane_b32 v3, s{S_STAMP+i}, {i}")
        k(f"s_mov_b64 exec, {(1 << (2*nst[0])) - 1}\nbuffer_store_dword v3, v2, {sr(R_WS,4)}, s{T} offen")
    k("s_waitcnt vmcnt(0)\nEND:\ns_endpgm")
    return k

HEADER = open("cdna_kernels/" + KN + ".s.ref").read().split("; Override launch")[0] if __name__ == "__main__" else ""
def emit(path, **kw):
    k = gen(**kw)
    k.L = hz.insert_nops(k.L, verbose=True)
    ks = [k]
    o = kw.get("opt") or {}
    if o.get("pre"):
        p = Kern("pre_kernel", o["pre"], 64, 0, vgpr=8, sgpr=16)
        p("""s_memrealtime s[4:5]
        s_load_dwordx2 s[8:9], s[0:1], 112
        s_cmp_eq_u32 s2, 0
        s_cbranch_scc0 PEND
        s_mov_b32 s10, 4096
        s_mov_b32 s11, 0x00020000
        s_waitcnt lgkmcnt(0)
        v_mov_b32 v1, 0x800
        v_mov_b32 v2, s4
        buffer_store_dword v2, v1, s[8:11], 0 offen
        s_waitcnt vmcnt(0)
        PEND:
        s_endpgm""")
        ks = [p, k]
    open(path, "w").write(module(ks))
    return k

if __name__ == "__main__":
    import argparse
    ap = argparse.ArgumentParser()
    ap.add_argument("out"); ap.add_argument("--stop"); ap.add_argument("--stamps", action="store_true")
    ap.add_argument("--spin", type=int, default=SPIN); ap.add_argument("--rt", action="store_true"); ap.add_argument("--sel")
    a = ap.parse_args()
    kk = emit(a.out, stop=a.stop, stamps=a.stamps, spin=a.spin, rt=a.rt, sel=(a.sel.split(",") if a.sel else None))
    print(kk.stamp_names)
```
